```python
import torch

def _softmax(x, axis=-1):
    return torch.softmax(x, dim=axis)
def _gelu(x):
    return torch.nn.functional.gelu(x, approximate="tanh")
def _silu(x):
    return torch.nn.functional.silu(x)
def _sigmoid(x):
    return torch.sigmoid(x)
def _layernorm(x, axis=-1, eps=1e-5):
    m = x.mean(dim=axis, keepdim=True)
    v = x.var(dim=axis, keepdim=True, unbiased=False)
    return (x - m) / torch.sqrt(v + eps)
def _scatter_add(tgt, idx, src, axis=0):
    return tgt.clone().index_add_(axis, idx, src)
def _segment_sum(src, seg, n):
    out = torch.zeros((n,) + src.shape[1:], dtype=src.dtype)
    return out.index_add_(0, seg, src)
def _pad(x, pw):
    flat = tuple(v for pair in reversed(pw) for v in pair)
    return torch.nn.functional.pad(x, flat)

kernel_name = 'interleave_layers__ssm_conv_h3__glu_gated_swiglu__prompt'

def setup_inputs():

    _w = (lambda a: (lambda t: t.to(torch.bfloat16) if t.is_floating_point() else t)(torch.as_tensor(a)))
    def _A_setup():
        B, S, D = 1, 2048, 576
        ks = 4
        return {
            "q": _w((lambda *s: torch.randn(*s, dtype=torch.bfloat16) * 0.05)(B, S, D)),
            "k": _w((lambda *s: torch.randn(*s, dtype=torch.bfloat16) * 0.2)(B, S, D)),
            "v": _w((lambda *s: torch.randn(*s, dtype=torch.bfloat16) * 0.2)(B, S, D)),
            "shift_k": _w((lambda *s: torch.randn(*s, dtype=torch.bfloat16) * 0.2)(D, ks) * 0.5),
            "ssm_k": _w((lambda *s: torch.randn(*s, dtype=torch.bfloat16) * 0.4)(D, S) * (1.0 / S ** 0.5)),
            "ssm_D": _w((lambda *s: torch.randn(*s, dtype=torch.bfloat16) * 0.2)(D)),
        }
    _A_in = _A_setup()

    def _B_setup():
        B, S, D, F = 1, 2048, 576, 4608
        return {
            "x": _w((lambda *s: torch.randn(*s, dtype=torch.bfloat16) * 0.05)(B, S, D)),
            "w1": _w((lambda *s: torch.randn(*s, dtype=torch.bfloat16) * 0.2)(D, F) * (2.0 / D) ** 0.5),
            "w3": _w((lambda *s: torch.randn(*s, dtype=torch.bfloat16) * 0.2)(D, F) * (2.0 / D) ** 0.5),
            "w2": _w((lambda *s: torch.randn(*s, dtype=torch.bfloat16) * 0.2)(F, D) * (2.0 / F) ** 0.5),
        }
    _B_in = _B_setup()

    return {
        "A_q": _A_in["q"],
        "A_k": _A_in["k"],
        "A_v": _A_in["v"],
        "A_shift_k": _A_in["shift_k"],
        "A_ssm_k": _A_in["ssm_k"],
        "A_ssm_D": _A_in["ssm_D"],
        "B_x": _B_in["x"],
        "B_w1": _B_in["w1"],
        "B_w3": _B_in["w3"],
        "B_w2": _B_in["w2"],
    }

def reference(A_q, A_k, A_v, A_shift_k, A_ssm_k, A_ssm_D, B_x, B_w1, B_w3, B_w2):
    def _A_ref(q, k, v, shift_k, ssm_k, ssm_D):
        B, S, D = q.shape
        ks = shift_k.shape[-1]
        k_pad = _pad(k, ((0, 0), (ks - 1, 0), (0, 0)))
        k_shift = torch.zeros_like(k)
        for t in range(ks):
            k_shift = k_shift + k_pad[:, t:t + S, :] * shift_k[:, ks - 1 - t][None, None, :]
        kv = k_shift * v
        L = 2 * S
        kv_pad = _pad(kv, ((0, 0), (0, S), (0, 0)))
        kf_pad = _pad(ssm_k, ((0, 0), (0, S)))
        kv_f = (lambda x, axes=(-2,-1): torch.fft.rfft2(x.float(), dim=axes))(kv_pad[:, None, :, :], axes=(1, 2))
        kf_f = (lambda x, axes=(-2,-1): torch.fft.rfft2(x.float(), dim=axes))(kf_pad[:, None, :], axes=(1, 2))
        kf_f = (lambda x, *d: x.permute(*d))(kf_f, 1, 2, 0)
        y_f = kv_f * kf_f[None, :, :, :]
        y = (lambda x, s, axes=(-2,-1): torch.fft.irfft2(x, s=s, dim=axes).to(torch.bfloat16))(y_f, (1, L), axes=(1, 2))[:, 0, :S, :]
        y = y + kv * ssm_D[None, None, :]
        return q * y

    def _B_ref(x, w1, w3, w2):
        gate = torch.einsum("bsd,df->bsf", x, w1)
        up = torch.einsum("bsd,df->bsf", x, w3)
        h = _silu(gate) * up
        out = torch.einsum("bsf,fd->bsd", h, w2)
        return out

    x = A_q
    x = x + _A_ref(_layernorm(x, axis=-1), A_k, A_v, A_shift_k, A_ssm_k, A_ssm_D)
    x = x + _B_ref(_layernorm(x, axis=-1), B_w1, B_w3, B_w2)
    x = x + _A_ref(_layernorm(x, axis=-1), A_k, A_v, A_shift_k, A_ssm_k, A_ssm_D)
    x = x + _B_ref(_layernorm(x, axis=-1), B_w1, B_w3, B_w2)
    return x
```

```python
import sys

S, D, F = 2048, 576, 4608
WS_Y  = 0x0000000
WS_X1 = 0x0400000
WS_XN = 0x0800000
WS_X3 = 0x0C00000
WS_H  = 0x1000000
WS_P  = 0x3000000
XB = S * D * 2
HB = S * F * 2
PB = 4 * S * D * 4
WB = D * F * 2

out = []
def e(s=""):
    out.append(s)
def I(s):
    out.append("    " + s)
def nop(n):
    I(f"s_nop {n}")

def kernel_begin(name, nwg):
    e(f".globl {name}")
    e(".p2align 8")
    e(f".type {name},@function")
    e(f"{name}:")
    I(f"s_cmp_ge_u32 s2, {nwg}")
    I(f"s_cbranch_scc1 {name}_done")

def kernel_end(name):
    e(f"{name}_done:")
    I("s_endpgm")

def descriptor(name, vgpr, sgpr=96):
    e(f".amdhsa_kernel {name}")
    e(f"  .amdhsa_next_free_vgpr {vgpr}")
    e(f"  .amdhsa_next_free_sgpr {sgpr}")
    e(f"  .amdhsa_accum_offset {(vgpr + 3) // 4 * 4}")
    e("  .amdhsa_group_segment_fixed_size 0")
    e("  .amdhsa_kernarg_size 104")
    e("  .amdhsa_user_sgpr_count 2")
    e("  .amdhsa_user_sgpr_kernarg_segment_ptr 1")
    e("  .amdhsa_system_sgpr_workgroup_id_x 1")
    e(".end_amdhsa_kernel")

def srd(dst, lo, hi, nbytes, off=0):
    if off:
        I(f"s_add_u32 s{dst}, s{lo}, {off:#x}")
        I(f"s_addc_u32 s{dst+1}, s{hi}, 0")
    else:
        I(f"s_mov_b32 s{dst}, s{lo}")
        I(f"s_mov_b32 s{dst+1}, s{hi}")
    I(f"s_mov_b32 s{dst+2}, {nbytes:#x}")
    I(f"s_mov_b32 s{dst+3}, 0x00020000")

def rnd2(a, b, tmp, mask):
    I(f"v_cvt_pk_bf16_f32 v{tmp}, v{a}, v{b}")
    I(f"v_lshlrev_b32 v{a}, 16, v{tmp}")
    I(f"v_and_b32 v{b}, s{mask}, v{tmp}")

def row_kernel(name, mode):
    kernel_begin(name, 512)
    I("s_load_dwordx2 s[4:5], s[0:1], 0")
    I("s_load_dwordx2 s[6:7], s[0:1], 80")
    I("s_load_dwordx2 s[8:9], s[0:1], 96")
    I("s_mov_b32 s40, 0xffff0000")
    I("v_lshrrev_b32 v1, 4, v0")
    I("s_lshl_b32 s3, s2, 2")
    I("v_add_u32 v1, s3, v1")
    I("v_and_b32 v2, 15, v0")
    I("s_movk_i32 s41, 1152")
    I("v_mul_lo_u32 v3, v1, s41")
    I("v_lshl_add_u32 v3, v2, 3, v3")
    I("v_lshlrev_b32 v4, 1, v3")
    I("s_waitcnt lgkmcnt(0)")
    if mode == 'A':
        srd(12, 4, 5, XB)
    elif mode == 'B':
        srd(12, 8, 9, XB, WS_X1)
    else:
        srd(12, 8, 9, XB, WS_X3)
    srd(16, 8, 9, XB, WS_Y)
    srd(20, 8, 9, PB, WS_P)
    if mode == 'A':
        srd(24, 8, 9, XB, WS_X1)
    elif mode == 'B':
        srd(24, 8, 9, XB, WS_X3)
    else:
        srd(24, 6, 7, XB)
    srd(28, 8, 9, XB, WS_XN)
    X = 10
    Yr = 46
    L = 82
    L2 = 100
    PT = 120
    for i in range(9):
        I(f"buffer_load_dwordx2 v[{L+2*i}:{L+2*i+1}], v3, s[12:15], 0 offen offset:{i*128}")
    if mode != 'C':
        for i in range(9):
            I(f"buffer_load_dwordx2 v[{L2+2*i}:{L2+2*i+1}], v3, s[16:19], 0 offen offset:{i*128}")
    if mode != 'A':
        for z in range(3):
            I(f"s_mov_b32 s42, {z*S*D*4:#x}")
            for i in range(9):
                I(f"buffer_load_dwordx4 v[{PT+36*z+4*i}:{PT+36*z+4*i+3}], v4, s[20:23], s42 offen offset:{i*256}")
    I("s_waitcnt vmcnt(0)" )
    for i in range(9):
        I(f"v_lshlrev_b32 v{X+4*i}, 16, v{L+2*i}")
        I(f"v_and_b32 v{X+4*i+1}, s40, v{L+2*i}")
        I(f"v_lshlrev_b32 v{X+4*i+2}, 16, v{L+2*i+1}")
        I(f"v_and_b32 v{X+4*i+3}, s40, v{L+2*i+1}")
    if mode != 'C':
        for i in range(9):
            I(f"v_lshlrev_b32 v{Yr+4*i}, 16, v{L2+2*i}")
            I(f"v_and_b32 v{Yr+4*i+1}, s40, v{L2+2*i}")
            I(f"v_lshlrev_b32 v{Yr+4*i+2}, 16, v{L2+2*i+1}")
            I(f"v_and_b32 v{Yr+4*i+3}, s40, v{L2+2*i+1}")
    if mode != 'A':
        for i in range(36):
            I(f"v_add_f32 v{PT+i}, v{PT+i}, v{PT+36+i}")
        I(f"s_mov_b32 s42, {3*S*D*4:#x}")
        for i in range(9):
            I(f"buffer_load_dwordx4 v[{PT+36+4*i}:{PT+36+4*i+3}], v4, s[20:23], s42 offen offset:{i*256}")
        for i in range(36):
            I(f"v_add_f32 v{PT+i}, v{PT+i}, v{PT+72+i}")
        I("s_waitcnt vmcnt(0)")
        for i in range(36):
            I(f"v_add_f32 v{PT+i}, v{PT+i}, v{PT+36+i}")
        for i in range(0, 36, 2):
            rnd2(PT+i, PT+i+1, 5, 40)
        for i in range(36):
            I(f"v_add_f32 v{X+i}, v{X+i}, v{PT+i}")
        for i in range(0, 36, 2):
            if mode == 'C':
                I(f"v_cvt_pk_bf16_f32 v{L+i//2}, v{X+i}, v{X+i+1}")
            else:
                rnd2(X+i, X+i+1, 5, 40)
    if mode == 'C':
        for i in range(9):
            I(f"buffer_store_dwordx2 v[{L+2*i}:{L+2*i+1}], v3, s[24:27], 0 offen offset:{i*128}")
        I("s_waitcnt vmcnt(0)")
        kernel_end(name)
        return

    def rowsum(r):
        for sh in (8, 4, 2, 1):
            nop(1)
            I(f"v_add_f32_dpp v{r}, v{r}, v{r} row_ror:{sh} row_mask:0xf bank_mask:0xf")

    def layernorm(src, dst):
        I(f"v_add_f32 v5, v{src}, v{src+1}")
        for i in range(2, 36):
            I(f"v_add_f32 v5, v5, v{src+i}")
        rowsum(5)
        I("v_mul_f32 v5, 0x3ae38e39, v5")
        I("v_mov_b32 v6, 0")
        for i in range(36):
            I(f"v_sub_f32 v7, v{src+i}, v5")
            I("v_fmac_f32 v6, v7, v7")
        rowsum(6)
        I("v_mul_f32 v6, 0x3ae38e39, v6")
        rnd2(5, 6, 7, 40)
        I("v_add_f32 v6, 0x3727c5ac, v6")
        I("v_cvt_pk_bf16_f32 v7, v6, v6")
        I("v_lshlrev_b32 v6, 16, v7")
        I("v_sqrt_f32 v6, v6")
        nop(0)
        I("v_cvt_pk_bf16_f32 v7, v6, v6")
        I("v_lshlrev_b32 v6, 16, v7")
        I("v_rcp_f32 v6, v6")
        for i in range(36):
            I(f"v_sub_f32 v{dst+i}, v{src+i}, v5")
        for i in range(0, 36, 2):
            rnd2(dst+i, dst+i+1, 7, 40)
        for i in range(36):
            I(f"v_mul_f32 v{dst+i}, v{dst+i}, v6")
        for i in range(0, 36, 2):
            rnd2(dst+i, dst+i+1, 7, 40)

    N = 120
    layernorm(X, N)
    for i in range(36):
        I(f"v_mul_f32 v{N+i}, v{N+i}, v{Yr+i}")
    for i in range(0, 36, 2):
        rnd2(N+i, N+i+1, 7, 40)
    for i in range(36):
        I(f"v_add_f32 v{X+i}, v{X+i}, v{N+i}")
    for i in range(0, 36, 2):
        I(f"v_cvt_pk_bf16_f32 v{L+i//2}, v{X+i}, v{X+i+1}")
        I(f"v_lshlrev_b32 v{X+i}, 16, v{L+i//2}")
        I(f"v_and_b32 v{X+i+1}, s40, v{L+i//2}")
    for i in range(9):
        I(f"buffer_store_dwordx2 v[{L+2*i}:{L+2*i+1}], v3, s[24:27], 0 offen offset:{i*128}")
    layernorm(X, N)
    for i in range(0, 36, 2):
        I(f"v_cvt_pk_bf16_f32 v{L2+i//2}, v{N+i}, v{N+i+1}")
    for i in range(9):
        I(f"buffer_store_dwordx2 v[{L2+2*i}:{L2+2*i+1}], v3, s[28:31], 0 offen offset:{i*128}")
    I("s_waitcnt vmcnt(0)")
    kernel_end(name)

CSTR = 5120 + 64
CHS = 4 * CSTR
USZ = 128 * 80
UB = 0
HC = 4 * USZ
CONV_LDS = HC + 4 * CHS
YS = HC
Z = 2051

def conv_kernel(name):
    kernel_begin(name, 144)
    I("s_load_dwordx4 s[4:7], s[0:1], 8")
    I("s_load_dwordx4 s[8:11], s[0:1], 24")
    I("s_load_dwordx2 s[12:13], s[0:1], 40")
    I("s_load_dwordx2 s[14:15], s[0:1], 96")
    I("s_mov_b32 s40, 0xffff0000")
    I("s_mov_b32 s41, 0xffff")
    I("s_waitcnt lgkmcnt(0)")
    I("s_lshl_b32 s3, s2, 5")
    I("s_add_u32 s16, s8, s3")
    I("s_addc_u32 s17, s9, 0")
    I("s_load_dwordx8 s[44:51], s[16:17], 0")
    I("s_lshl_b32 s3, s2, 3")
    I("s_add_u32 s16, s12, s3")
    I("s_addc_u32 s17, s13, 0")
    I("s_load_dwordx2 s[52:53], s[16:17], 0")
    srd(20, 4, 5, XB)
    srd(24, 6, 7, XB)
    srd(32, 14, 15, XB, WS_Y)
    I("v_lshrrev_b32 v1, 6, v0")
    nop(0)
    I("v_readfirstlane_b32 s42, v1")
    nop(3)
    I("s_lshl_b32 s3, s2, 2")
    I("s_add_u32 s3, s3, s42")
    I("s_lshl_b32 s3, s3, 12")
    I("s_add_u32 s28, s10, s3")
    I("s_addc_u32 s29, s11, 0")
    I("s_mov_b32 s30, 4096")
    I("s_mov_b32 s31, 0x00020000")
    I("v_and_b32 v2, 63, v0")
    I("v_lshlrev_b32 v3, 4, v2")
    I("v_sub_u32 v3, 4080, v3")
    HL = 100
    for it in range(5):
        if it:
            I(f"v_subrev_u32 v4, {1024*it}, v3")
        a = "v4" if it else "v3"
        I(f"buffer_load_dwordx4 v[{HL+6*it}:{HL+6*it+3}], {a}, s[28:31], 0 offen")
        I(f"buffer_load_dwordx2 v[{HL+6*it+4}:{HL+6*it+5}], {a}, s[28:31], 0 offen offset:16")
    I("s_movk_i32 s43, 1152")
    I("v_lshlrev_b32 v5, 3, v0")
    I("v_subrev_u32 v5, 3, v5")
    I("v_mul_lo_u32 v5, v5, s43")
    I("s_lshl_b32 s3, s2, 3")
    I("v_add_u32 v5, s3, v5")
    KL = 130
    VL = 152
    for r in range(11):
        if r:
            I(f"v_add_u32 v6, {1152*r}, v5")
        a = "v6" if r else "v5"
        I(f"buffer_load_dwordx2 v[{KL+2*r}:{KL+2*r+1}], {a}, s[20:23], 0 offen")
    for r in range(8):
        I(f"v_add_u32 v6, {1152*(r+3)}, v5")
        I(f"buffer_load_dwordx2 v[{VL+2*r}:{VL+2*r+1}], v6, s[24:27], 0 offen")
    I("v_mov_b32 v8, 0")
    I("v_mov_b32 v9, 0")
    I("v_mov_b32 v10, 0")
    I("v_mov_b32 v11, 0")
    I("v_lshrrev_b32 v12, 6, v0")
    I(f"s_movk_i32 s3, {USZ}")
    I("v_mul_lo_u32 v12, v12, s3")
    I("v_lshl_add_u32 v12, v2, 4, v12")
    for it in range(5):
        I(f"ds_write_b128 v12, v[8:11] offset:{UB + 1024*it}")
    I("s_waitcnt lgkmcnt(0)")
    for ch in range(4):
        I(f"s_lshl_b32 s{56+4*ch}, s{44+2*ch}, 16")
        I(f"s_and_b32 s{57+4*ch}, s{44+2*ch}, s40")
        I(f"s_lshl_b32 s{58+4*ch}, s{45+2*ch}, 16")
        I(f"s_and_b32 s{59+4*ch}, s{45+2*ch}, s40")
    I("s_lshl_b32 s72, s52, 16")
    I("s_and_b32 s73, s52, s40")
    I("s_lshl_b32 s74, s53, 16")
    I("s_and_b32 s75, s53, s40")
    I("s_waitcnt vmcnt(19)")
    I(f"s_movk_i32 s3, {CHS}")
    I("s_mul_i32 s3, s3, s42")
    I("v_lshlrev_b32 v13, 4, v2")
    I("v_add_u32 v13, s3, v13")
    for it in range(5):
        w = lambda i: HL + 6*it + i
        for a in range(4):
            for q in range(4):
                d = 14 + 4*a + q
                if a == 0:
                    I(f"v_alignbit_b32 v{d}, v{w(5-q)}, v{w(5-q)}, 16")
                elif a == 1:
                    I(f"v_bfi_b32 v{d}, s41, v{w(5-q)}, v{w(4-q)}")
                elif a == 2:
                    I(f"v_alignbit_b32 v{d}, v{w(4-q)}, v{w(4-q)}, 16")
                else:
                    I(f"v_bfi_b32 v{d}, s41, v{w(4-q)}, v{w(3-q)}")
        for a in range(4):
            I(f"ds_write_b128 v13, v[{14+4*a}:{17+4*a}] offset:{HC + a*CSTR + 1024*it}")
    I("s_waitcnt vmcnt(0)")
    KF = 30
    VF = 74
    for r in range(11):
        I(f"v_lshlrev_b32 v{KF+4*r}, 16, v{KL+2*r}")
        I(f"v_and_b32 v{KF+4*r+1}, s40, v{KL+2*r}")
        I(f"v_lshlrev_b32 v{KF+4*r+2}, 16, v{KL+2*r+1}")
        I(f"v_and_b32 v{KF+4*r+3}, s40, v{KL+2*r+1}")
    I("v_lshrrev_b32 v12, 2, v0")
    I("v_mul_u32_u24 v12, 80, v12")
    I("v_and_b32 v13, 3, v0")
    I("v_lshl_add_u32 v12, v13, 4, v12")
    for ch in range(4):
        for sp in range(4):
            A0, A1, T0, T1, TMP = 80, 81, 82, 83, 84
            for t in range(4):
                wsg = 56 + 4*ch + 3 - t
                d0, d1 = (A0, A1) if t == 0 else (T0, T1)
                I(f"v_mul_f32 v{d0}, s{wsg}, v{KF+4*(2*sp+t)+ch}")
                I(f"v_mul_f32 v{d1}, s{wsg}, v{KF+4*(2*sp+1+t)+ch}")
                rnd2(d0, d1, TMP, 40)
                if t:
                    I(f"v_add_f32 v{A0}, v{A0}, v{T0}")
                    I(f"v_add_f32 v{A1}, v{A1}, v{T1}")
                    rnd2(A0, A1, TMP, 40)
            for k2, rr in ((T0, 2*sp), (T1, 2*sp+1)):
                src = VL + 2*rr + (ch >> 1)
                if ch & 1:
                    I(f"v_and_b32 v{k2}, s40, v{src}")
                else:
                    I(f"v_lshlrev_b32 v{k2}, 16, v{src}")
            I(f"v_mul_f32 v{A0}, v{A0}, v{T0}")
            I(f"v_mul_f32 v{A1}, v{A1}, v{T1}")
            I(f"v_cvt_pk_bf16_f32 v{88+sp}, v{A0}, v{A1}")
        I(f"ds_write_b128 v12, v[88:91] offset:{UB + ch*USZ + 64*80}")
    I("s_waitcnt lgkmcnt(0)")
    I("s_barrier")
    I("v_and_b32 v3, 31, v2")
    I("v_lshrrev_b32 v4, 5, v2")
    I(f"v_sub_u32 v5, {Z}, v3")
    I("v_and_b32 v6, 3, v5")
    I("v_sub_u32 v5, v5, v6")
    I("v_lshl_add_u32 v5, v4, 3, v5")
    I(f"v_subrev_u32 v5, {32*63}, v5")
    I("v_lshlrev_b32 v5, 1, v5")
    I(f"v_mul_u32_u24 v6, {CSTR}, v6")
    I("v_add_u32 v5, v5, v6")
    I(f"s_movk_i32 s3, {CHS}")
    I("s_mul_i32 s3, s3, s42")
    I(f"s_add_u32 s3, s3, {HC}")
    I("v_add_u32 v5, s3, v5")
    I("v_add_u32 v6, 1, v3")
    I("v_mul_u32_u24 v6, 80, v6")
    I("v_lshl_add_u32 v6, v4, 4, v6")
    I(f"s_movk_i32 s3, {USZ}")
    I("s_mul_i32 s3, s3, s42")
    I(f"s_add_u32 s3, s3, {UB}")
    I("v_add_u32 v6, s3, v6")
    ACC = 64
    for i in range(32):
        I(f"v_mov_b32 v{ACC+i}, 0")
    steps = [(m, ks) for m in range(64) for ks in range(2)]
    RING = 4
    RB = 96
    def nreads(st):
        return 4 if st[0] < 32 else 3
    def issue(i):
        m, ks = steps[i]
        b = RB + 12 * (i % RING)
        offA = (32*(63-m) + 16*ks) * 2
        I(f"ds_read_b64 v[{b}:{b+1}], v5 offset:{offA}")
        I(f"ds_read_b64 v[{b+2}:{b+3}], v5 offset:{offA+8}")
        I(f"ds_read_b128 v[{b+8}:{b+11}], v6 offset:{(63-m+32)*80 + 32*ks}")
        if m < 32:
            I(f"ds_read_b128 v[{b+4}:{b+7}], v6 offset:{(63-m)*80 + 32*ks}")
    LA = 2
    for i in range(LA):
        issue(i)
    for i in range(len(steps)):
        if i + LA < len(steps):
            issue(i + LA)
        pend = sum(nreads(steps[j]) for j in range(i+1, min(i+LA+1, len(steps))))
        I(f"s_waitcnt lgkmcnt({pend})")
        b = RB + 12 * (i % RING)
        m, ks = steps[i]
        I(f"v_mfma_f32_32x32x16_bf16 v[{ACC+16}:{ACC+31}], v[{b}:{b+3}], v[{b+8}:{b+11}], v[{ACC+16}:{ACC+31}]")
        if m < 32:
            I(f"v_mfma_f32_32x32x16_bf16 v[{ACC}:{ACC+15}], v[{b}:{b+3}], v[{b+4}:{b+7}], v[{ACC}:{ACC+15}]")
    nop(15)
    I("s_barrier")
    I("v_mul_u32_u24 v7, 264, v3")
    I("v_lshl_add_u32 v7, v4, 5, v7")
    I("s_lshl_b32 s3, s42, 1")
    I("v_add_u32 v7, s3, v7")
    for pb in range(2):
        for i in range(0, 16, 2):
            I(f"v_cvt_pk_bf16_f32 v8, v{ACC+16*pb+i}, v{ACC+16*pb+i+1}")
            r0 = 8*(i >> 2) + (i & 3)
            off = YS + pb*32*264 + r0*8
            I(f"ds_write_b16 v7, v8 offset:{off}")
            I(f"ds_write_b16_d16_hi v7, v8 offset:{off+8}")
    I("s_waitcnt lgkmcnt(0)")
    I("s_barrier")
    I("v_lshrrev_b32 v3, 5, v0")
    I("v_lshlrev_b32 v4, 3, v0")
    I("v_lshl_add_u32 v4, v3, 3, v4")
    I("v_mul_u32_u24 v5, 80, v3")
    I("v_and_b32 v6, 31, v0")
    I("v_lshl_add_u32 v5, v6, 1, v5")
    I("v_mul_u32_u24 v6, 1152, v0")
    I("s_lshl_b32 s3, s2, 3")
    I("v_add_u32 v6, s3, v6")
    for i in range(8):
        I(f"ds_read_b64 v[10:11], v4 offset:{YS + i*8*264}")
        for ch in range(4):
            I(f"ds_read_u16 v{12+ch}, v5 offset:{UB + ch*USZ + (64 + 8*i)*80}")
        I("s_waitcnt lgkmcnt(0)")
        for ch in range(4):
            I(f"v_lshlrev_b32 v{12+ch}, 16, v{12+ch}")
            I(f"v_mul_f32 v{12+ch}, s{72+ch}, v{12+ch}")
        rnd2(12, 13, 16, 40)
        rnd2(14, 15, 16, 40)
        I("v_lshlrev_b32 v17, 16, v10")
        I("v_and_b32 v18, s40, v10")
        I("v_lshlrev_b32 v19, 16, v11")
        I("v_and_b32 v20, s40, v11")
        for ch in range(4):
            I(f"v_add_f32 v{12+ch}, v{12+ch}, v{17+ch}")
        I("v_cvt_pk_bf16_f32 v22, v12, v13")
        I("v_cvt_pk_bf16_f32 v23, v14, v15")
        if i:
            I(f"v_add_u32 v6, {256*1152}, v6")
        I("buffer_store_dwordx2 v[22:23], v6, s[32:35], 0 offen")
        nop(1)
    I("s_waitcnt vmcnt(0)")
    kernel_end(name)

STG = 36864
NSLOT = 4
GEMM_LDS = NSLOT * STG

class VmQueue:
    def __init__(self):
        self.q = []
    def push(self, tag):
        self.q.append(tag)
    def wait_for(self, tags):
        last = -1
        for i, t in enumerate(self.q):
            if t in tags:
                last = i
        n = len(self.q) - 1 - last
        I(f"s_waitcnt vmcnt({n})")
        self.q = self.q[last+1:]

def gemm1_kernel(name):
    kernel_begin(name, 256)
    I("s_load_dwordx4 s[4:7], s[0:1], 56")
    I("s_load_dwordx2 s[8:9], s[0:1], 96")
    I("s_and_b32 s3, s2, 7")
    I("s_lshr_b32 s44, s2, 3")
    I("s_and_b32 s45, s44, 7")
    I("s_lshr_b32 s44, s44, 3")
    I("s_lshl_b32 s3, s3, 2")
    I("s_add_u32 s46, s3, s44")
    I("v_lshrrev_b32 v1, 6, v0")
    I("v_and_b32 v2, 63, v0")
    I("v_readfirstlane_b32 s42, v1")
    I("s_waitcnt lgkmcnt(0)")
    srd(12, 4, 5, WB)
    srd(16, 6, 7, WB)
    srd(20, 8, 9, XB, WS_XN)
    srd(24, 8, 9, HB, WS_H)
    I("s_mul_i32 s47, s46, 288")
    I("s_lshl_b32 s48, s45, 8")
    I("s_lshl_b32 s3, s42, 5")
    I("s_add_u32 s48, s48, s3")
    I("v_and_b32 v3, 15, v2")
    I("v_lshrrev_b32 v4, 4, v2")
    I("v_add_u32 v5, s48, v3")
    I("s_movk_i32 s3, 1152")
    I("v_mul_lo_u32 v10, v5, s3")
    I("v_lshl_add_u32 v10, v4, 4, v10")
    I("v_add_u32 v11, 18432, v10")
    I("s_movk_i32 s3, 9216")
    I("v_mul_lo_u32 v12, v5, s3")
    I("v_lshl_add_u32 v12, v4, 3, v12")
    I("v_add_u32 v12, s47, v12")
    I(f"v_add_u32 v13, {16*9216}, v12")
    I("v_lshlrev_b32 v5, 3, v3")
    I("v_lshl_add_u32 v5, v4, 12, v5")
    I("v_and_b32 v6, 1, v4")
    I("v_lshl_add_u32 v14, v6, 7, v5")
    I("v_xor_b32 v6, 1, v6")
    I("v_lshl_add_u32 v15, v6, 7, v5")
    I("v_lshlrev_b32 v16, 3, v2")
    I("v_lshrrev_b32 v5, 5, v2")
    I("v_lshlrev_b32 v5, 2, v5")
    I("v_bfe_u32 v6, v2, 1, 2")
    I("v_add_u32 v5, v5, v6")
    I("s_movk_i32 s3, 9216")
    I("v_mul_lo_u32 v5, v5, s3")
    I("v_bfe_u32 v6, v2, 4, 1")
    I("v_lshl_add_u32 v5, v6, 6, v5")
    I("v_bfe_u32 v6, v2, 3, 1")
    I("s_and_b32 s3, s42, 1")
    I("v_xor_b32 v6, s3, v6")
    I("v_lshl_add_u32 v5, v6, 5, v5")
    I("v_and_b32 v6, 1, v2")
    I("v_lshl_add_u32 v17, v6, 4, v5")
    I("v_lshrrev_b32 v5, 5, v2")
    I("v_lshlrev_b32 v5, 2, v5")
    I("v_bfe_u32 v6, v2, 3, 2")
    I("v_lshl_add_u32 v5, v6, 3, v5")
    I("v_bfe_u32 v6, v2, 1, 2")
    I("v_add_u32 v5, v5, v6")
    I("s_movk_i32 s3, 9216")
    I("v_mul_lo_u32 v5, v5, s3")
    I("v_and_b32 v6, 1, v2")
    I("v_lshl_add_u32 v18, v6, 4, v5")
    I("s_mul_i32 s50, s42, 73728")
    I("s_add_u32 s50, s50, s47")
    I("s_and_b32 s51, s42, 3")
    I("s_lshr_b32 s3, s51, 1")
    I("s_mul_i32 s52, s3, 294912")
    I("s_add_u32 s52, s52, s47")
    I("s_add_u32 s52, s52, 256")
    I("s_and_b32 s3, s51, 1")
    I("s_cmp_eq_u32 s3, 0")
    I("s_cselect_b32 s28, s12, s16")
    I("s_cselect_b32 s29, s13, s17")
    I("s_mov_b32 s30, s14")
    I("s_mov_b32 s31, s15")
    I("s_lshl_b32 s53, s42, 12")
    I("s_lshl_b32 s54, s51, 10")
    I("s_add_u32 s54, s54, 32768")
    ACC, AR, BR = 112, 64, 40
    for i in range(144):
        I(f"v_mov_b32 v{ACC+i}, 0")
    vq = VmQueue()
    def issueA(st):
        b = AR + 16 * (st % 3)
        ops = []
        for ks in range(2):
            for mb in range(2):
                r = b + 8*ks + 4*mb
                ops.append(f"buffer_load_dwordx4 v[{r}:{r+3}], v{10+mb}, s[20:23], s55 offen offset:{64*ks}")
        return [(f"s_movk_i32 s55, {128*st}", None)] + [(o, ('A', st)) for o in ops]
    def issueD(st):
        slot = (st % NSLOT) * STG
        ops = []
        for mat in range(2):
            for Q in range(2):
                ops.append((f"s_add_u32 m0, s53, {slot + (2*mat+Q)*1024}", None))
                ops.append((f"s_add_u32 s56, s50, {st*64*9216 + 128*Q}", None))
                ops.append((f"buffer_load_dwordx4 v17, s[{12+4*mat}:{15+4*mat}], s56 offen lds", ('D', st)))
        ops.append((f"s_add_u32 m0, s54, {slot}", None))
        ops.append((f"s_add_u32 s56, s52, {st*64*9216}", None))
        ops.append((f"buffer_load_dwordx4 v18, s[28:31], s56 offen lds", ('D', st)))
        return ops
    def emit_ops(ops):
        for o, tag in ops:
            I(o)
            if tag:
                vq.push(tag)
    emit_ops(issueA(0)); emit_ops(issueD(0)); emit_ops(issueA(1)); emit_ops(issueD(1)); emit_ops(issueD(2))
    NST = 9
    RING, LA = 6, 4
    for st in range(NST):
        slot = (st % NSLOT) * STG
        vq.wait_for({('A', st), ('D', st)})
        I("s_barrier")
        I(f"v_add_u32 v20, {slot}, v14")
        I(f"v_add_u32 v21, {slot}, v15")
        I(f"v_add_u32 v22, {slot}, v16")
        side = []
        if st + 2 < NST:
            side += issueA(st + 2)
        if st + 3 < NST:
            side += issueD(st + 3)
        frags = [(ks, t, mat) for ks in range(2) for t in range(9) for mat in range(2)]
        def rd(fi):
            ks, t, mat = frags[fi]
            b = BR + 4 * (fi % RING)
            for j in range(2):
                if t < 8:
                    tt = t & 3
                    off = ks*16384 + mat*2048 + (t >> 2)*1024 + 256*(2*j + (tt >> 1))
                    a = 20 + (tt & 1)
                else:
                    off = 32768 + (2*ks + mat)*1024 + 512*j
                    a = 22
                I(f"ds_read_b64_tr_b16 v[{b+2*j}:{b+2*j+1}], v{a} offset:{off}")
        for fi in range(LA):
            rd(fi)
        for fi in range(36):
            if fi + LA < 36:
                rd(fi + LA)
            pend = 2 * min(LA, 35 - fi)
            I(f"s_waitcnt lgkmcnt({pend})")
            ks, t, mat = frags[fi]
            b = BR + 4 * (fi % RING)
            for mb in range(2):
                acc = ACC + ((mat*9 + t)*2 + mb) * 4
                ar = AR + 16*(st % 3) + 8*ks + 4*mb
                I(f"v_mfma_f32_16x16x32_bf16 v[{acc}:{acc+3}], v[{b}:{b+3}], v[{ar}:{ar+3}], v[{acc}:{acc+3}]")
            if side and fi >= 1:
                chunk, side = side[:3], side[3:]
                emit_ops(chunk)
        emit_ops(side)
    nop(15)
    I("s_mov_b32 s60, 0xbfb8aa3b")
    for mb in range(2):
        for t in range(9):
            g = ACC + ((0*9 + t)*2 + mb)*4
            u = ACC + ((1*9 + t)*2 + mb)*4
            T = 24
            for i in range(4):
                I(f"v_mul_f32 v{T+i}, s60, v{g+i}")
            for i in range(4):
                I(f"v_exp_f32 v{T+i}, v{T+i}")
            for i in range(4):
                I(f"v_mul_f32 v{g+i}, v{g+i}, v{u+i}")
            for i in range(4):
                I(f"v_add_f32 v{T+i}, 1.0, v{T+i}")
            for i in range(4):
                I(f"v_rcp_f32 v{T+i}, v{T+i}")
            nop(0)
            for i in range(4):
                I(f"v_mul_f32 v{g+i}, v{g+i}, v{T+i}")
            I(f"v_cvt_pk_bf16_f32 v{u}, v{g}, v{g+1}")
            I(f"v_cvt_pk_bf16_f32 v{u+1}, v{g+2}, v{g+3}")
            I(f"buffer_store_dwordx2 v[{u}:{u+1}], v{12+mb}, s[24:27], 0 offen offset:{32*t}")
    I("s_waitcnt vmcnt(0)")
    kernel_end(name)

def gemm2_kernel(name):
    kernel_begin(name, 256)
    I("s_load_dwordx2 s[4:5], s[0:1], 72")
    I("s_load_dwordx2 s[8:9], s[0:1], 96")
    I("s_and_b32 s3, s2, 7")
    I("s_lshr_b32 s44, s2, 3")
    I("s_and_b32 s46, s44, 3")
    I("s_bfe_u32 s49, s44, 0x20002")
    I("s_lshr_b32 s44, s44, 4")
    I("s_lshl_b32 s3, s3, 1")
    I("s_add_u32 s45, s3, s44")
    I("v_lshrrev_b32 v1, 6, v0")
    I("v_and_b32 v2, 63, v0")
    I("v_readfirstlane_b32 s42, v1")
    I("s_waitcnt lgkmcnt(0)")
    srd(12, 4, 5, WB)
    srd(20, 8, 9, HB, WS_H)
    srd(24, 8, 9, PB, WS_P)
    I("s_mul_i32 s47, s46, 288")
    I("s_lshl_b32 s48, s45, 7")
    I("s_and_b32 s3, s42, 1")
    I("s_lshl_b32 s3, s3, 6")
    I("s_add_u32 s48, s48, s3")
    I("s_lshr_b32 s43, s42, 1")
    I("s_mul_i32 s57, s49, 1152")
    I("s_mul_i32 s3, s43, 288")
    I("s_add_u32 s57, s57, s3")
    I("s_lshl_b32 s58, s57, 1")
    I("v_and_b32 v3, 15, v2")
    I("v_lshrrev_b32 v4, 4, v2")
    I("v_add_u32 v5, s48, v3")
    I("s_movk_i32 s3, 9216")
    I("v_mul_lo_u32 v10, v5, s3")
    I("v_lshl_add_u32 v10, v4, 4, v10")
    for mb in range(1, 4):
        I(f"v_add_u32 v{10+mb}, {mb*16*9216}, v10")
    I("s_movk_i32 s3, 2304")
    I("v_mul_lo_u32 v28, v5, s3")
    I("v_lshl_add_u32 v28, v4, 4, v28")
    I(f"s_mul_i32 s3, s49, {S*D*4}")
    I("s_lshl_b32 s59, s47, 1")
    I("s_add_u32 s3, s3, s59")
    I("v_add_u32 v28, s3, v28")
    for mb in range(1, 4):
        I(f"v_add_u32 v{28+mb}, {mb*16*2304}, v28")
    I("v_lshlrev_b32 v5, 3, v3")
    I("v_lshl_add_u32 v5, v4, 11, v5")
    I("s_lshl_b32 s3, s43, 13")
    I("v_add_u32 v5, s3, v5")
    I("v_and_b32 v6, 1, v4")
    I("v_lshl_add_u32 v14, v6, 7, v5")
    I("v_xor_b32 v6, 1, v6")
    I("v_lshl_add_u32 v15, v6, 7, v5")
    I("v_lshlrev_b32 v16, 3, v2")
    I("s_lshl_b32 s3, s43, 10")
    I("v_add_u32 v16, s3, v16")
    I("v_lshrrev_b32 v5, 5, v2")
    I("v_lshlrev_b32 v5, 2, v5")
    I("v_bfe_u32 v6, v2, 1, 2")
    I("v_add_u32 v5, v5, v6")
    I("v_mul_u32_u24 v5, 1152, v5")
    I("v_bfe_u32 v6, v2, 4, 1")
    I("v_lshl_add_u32 v5, v6, 6, v5")
    I("v_bfe_u32 v6, v2, 3, 1")
    I("s_and_b32 s3, s42, 1")
    I("v_xor_b32 v6, s3, v6")
    I("v_lshl_add_u32 v5, v6, 5, v5")
    I("v_and_b32 v6, 1, v2")
    I("v_lshl_add_u32 v17, v6, 4, v5")
    I("v_lshrrev_b32 v5, 5, v2")
    I("v_lshlrev_b32 v5, 2, v5")
    I("v_bfe_u32 v6, v2, 3, 2")
    I("v_lshl_add_u32 v5, v6, 3, v5")
    I("v_bfe_u32 v6, v2, 1, 2")
    I("v_add_u32 v5, v5, v6")
    I("v_mul_u32_u24 v5, 1152, v5")
    I("v_and_b32 v6, 1, v2")
    I("v_lshl_add_u32 v18, v6, 4, v5")
    I("s_and_b32 s51, s42, 3")
    I("s_lshr_b32 s3, s42, 2")
    I("s_lshl_b32 s61, s3, 1")
    I("s_mul_i32 s50, s49, 1152")
    I("s_mul_i32 s3, s61, 288")
    I("s_add_u32 s50, s50, s3")
    I("s_lshl_b32 s3, s51, 3")
    I("s_add_u32 s50, s50, s3")
    I("s_mul_i32 s50, s50, 1152")
    I("s_add_u32 s50, s50, s47")
    I("s_mul_i32 s52, s49, 1152")
    I("s_mul_i32 s3, s51, 288")
    I("s_add_u32 s52, s52, s3")
    I("s_mul_i32 s52, s52, 1152")
    I("s_add_u32 s52, s52, s47")
    I("s_add_u32 s52, s52, 256")
    I("s_lshl_b32 s53, s61, 2")
    I("s_add_u32 s53, s53, s51")
    I("s_lshl_b32 s53, s53, 11")
    I("s_lshl_b32 s54, s51, 10")
    I("s_add_u32 s54, s54, 32768")
    ACC, AR, BR = 112, 64, 40
    for i in range(144):
        I(f"v_mov_b32 v{ACC+i}, 0")
    vq = VmQueue()
    def issueA(st):
        b = AR + 16 * (st % 3)
        ops = [(f"s_add_u32 s55, s58, {64*st}", None)]
        for mb in range(4):
            r = b + 4*mb
            ops.append((f"buffer_load_dwordx4 v[{r}:{r+3}], v{10+mb}, s[20:23], s55 offen", ('A', st)))
        return ops
    def issueD(st):
        slot = (st % NSLOT) * STG
        ops = []
        for kk in range(2):
            for Q in range(2):
                ops.append((f"s_add_u32 m0, s53, {slot + kk*8192 + Q*1024}", None))
                ops.append((f"s_add_u32 s56, s50, {(st*32 + kk*288)*1152 + 128*Q}", None))
                ops.append((f"buffer_load_dwordx4 v17, s[12:15], s56 offen lds", ('D', st)))
        ops.append((f"s_add_u32 m0, s54, {slot}", None))
        ops.append((f"s_add_u32 s56, s52, {st*32*1152}", None))
        ops.append((f"buffer_load_dwordx4 v18, s[12:15], s56 offen lds", ('D', st)))
        return ops
    def emit_ops(ops):
        for o, tag in ops:
            I(o)
            if tag:
                vq.push(tag)
    emit_ops(issueA(0)); emit_ops(issueD(0)); emit_ops(issueA(1)); emit_ops(issueD(1)); emit_ops(issueD(2))
    NST = 9
    RING, LA = 6, 4
    for st in range(NST):
        slot = (st % NSLOT) * STG
        vq.wait_for({('A', st), ('D', st)})
        I("s_barrier")
        I(f"v_add_u32 v20, {slot}, v14")
        I(f"v_add_u32 v21, {slot}, v15")
        I(f"v_add_u32 v22, {slot}, v16")
        side = []
        if st + 2 < NST:
            side += issueA(st + 2)
        if st + 3 < NST:
            side += issueD(st + 3)
        def rd(t):
            b = BR + 4 * (t % RING)
            for j in range(2):
                if t < 8:
                    tt = t & 3
                    off = (t >> 2)*1024 + 256*(2*j + (tt >> 1))
                    a = 20 + (tt & 1)
                else:
                    off = 32768 + 512*j
                    a = 22
                I(f"ds_read_b64_tr_b16 v[{b+2*j}:{b+2*j+1}], v{a} offset:{off}")
        for t in range(LA):
            rd(t)
        for t in range(9):
            if t + LA < 9:
                rd(t + LA)
            pend = 2 * min(LA, 8 - t)
            I(f"s_waitcnt lgkmcnt({pend})")
            b = BR + 4 * (t % RING)
            for mb in range(4):
                acc = ACC + (t*4 + mb) * 4
                ar = AR + 16*(st % 3) + 4*mb
                I(f"v_mfma_f32_16x16x32_bf16 v[{acc}:{acc+3}], v[{b}:{b+3}], v[{ar}:{ar+3}], v[{acc}:{acc+3}]")
                if side:
                    chunk, side = side[:1], side[1:]
                    emit_ops(chunk)
        emit_ops(side)
    nop(15)
    I("s_barrier")
    I("v_lshlrev_b32 v5, 4, v2")
    I("s_and_b32 s3, s42, 3")
    I(f"s_mul_i32 s3, s3, {STG}")
    I("v_add_u32 v5, s3, v5")
    I("s_cmp_lt_u32 s42, 4")
    I(f"s_cbranch_scc1 {name}_r1")
    for i in range(36):
        I(f"ds_write_b128 v5, v[{ACC+4*i}:{ACC+4*i+3}] offset:{1024*i}")
    I("s_waitcnt lgkmcnt(0)")
    e(f"{name}_r1:")
    I("s_barrier")
    I("s_cmp_ge_u32 s42, 4")
    I(f"s_cbranch_scc1 {name}_r2")
    for i in range(36):
        I(f"ds_read_b128 v[{40+4*(i%8)}:{43+4*(i%8)}], v5 offset:{1024*i}")
        if i % 8 == 7 or i == 35:
            I("s_waitcnt lgkmcnt(0)")
            for i2 in range(i - i % 8, i + 1):
                for c in range(4):
                    I(f"v_add_f32 v{ACC+4*i2+c}, v{ACC+4*i2+c}, v{40+4*(i2%8)+c}")
    e(f"{name}_r2:")
    I("s_barrier")
    I("s_cmp_lt_u32 s42, 2")
    I(f"s_cbranch_scc1 {name}_r3")
    I("s_cmp_ge_u32 s42, 4")
    I(f"s_cbranch_scc1 {name}_r3")
    for i in range(36):
        I(f"ds_write_b128 v5, v[{ACC+4*i}:{ACC+4*i+3}] offset:{1024*i}")
    I("s_waitcnt lgkmcnt(0)")
    e(f"{name}_r3:")
    I("s_barrier")
    I("s_cmp_ge_u32 s42, 2")
    I(f"s_cbranch_scc1 {name}_done")
    I(f"v_add_u32 v5, {2*STG}, v5")
    for i in range(36):
        I(f"ds_read_b128 v[{40+4*(i%8)}:{43+4*(i%8)}], v5 offset:{1024*i}")
        if i % 8 == 7 or i == 35:
            I("s_waitcnt lgkmcnt(0)")
            for i2 in range(i - i % 8, i + 1):
                for c in range(4):
                    I(f"v_add_f32 v{ACC+4*i2+c}, v{ACC+4*i2+c}, v{40+4*(i2%8)+c}")
    for t in range(9):
        for mb in range(4):
            acc = ACC + (t*4 + mb)*4
            I(f"buffer_store_dwordx4 v[{acc}:{acc+3}], v{28+mb}, s[24:27], 0 offen offset:{64*t}")
    I("s_waitcnt vmcnt(0)")
    kernel_end(name)

def main(path):
    hdr = open("interleave_layers__ssm_conv_h3__glu_gated_swiglu__prompt.s.ref").read().split("\n")
    for l in hdr:
        if l.startswith(";") and "@launch" not in l:
            e(l)
    L = [("conv_kernel", 144, 256, CONV_LDS), ("rowa_kernel", 512, 64, 0),
         ("gemm1_kernel", 256, 512, GEMM_LDS), ("gemm2_kernel", 256, 512, GEMM_LDS),
         ("rowb_kernel", 512, 64, 0),
         ("gemm1_kernel", 256, 512, GEMM_LDS), ("gemm2_kernel", 256, 512, GEMM_LDS),
         ("rowc_kernel", 512, 64, 0)]
    for k, g, b, l in L:
        e(f"; @launch kernel={k} grid=({g},1,1) block=({b},1,1) lds={l}")
    e('.amdgcn_target "amdgcn-amd-amdhsa--gfx950"')
    e(".text")
    conv_kernel("conv_kernel")
    row_kernel("rowa_kernel", 'A')
    row_kernel("rowb_kernel", 'B')
    row_kernel("rowc_kernel", 'C')
    gemm1_kernel("gemm1_kernel")
    gemm2_kernel("gemm2_kernel")
    e('.section .rodata,"a"')
    for k, v in (("conv_kernel", 168), ("rowa_kernel", 232), ("rowb_kernel", 232), ("rowc_kernel", 232),
                 ("gemm1_kernel", 256), ("gemm2_kernel", 256)):
        e(".p2align 6")
        descriptor(k, v)
    open(path, "w").write("\n".join(out) + "\n")

if __name__ == "__main__":
    main(sys.argv[1] if len(sys.argv) > 1 else "interleave_layers__ssm_conv_h3__glu_gated_swiglu__prompt.s")
```

```python
import sys, os
ABL = os.environ.get("ABL", "").split(",")

S, D, F = 2048, 576, 4608
WS_Y  = 0x0000000
WS_X1 = 0x0400000
WS_XN = 0x0800000
WS_X3 = 0x0C00000
WS_H  = 0x1000000
WS_P  = 0x3000000
XB = S * D * 2
HB = S * F * 2
PB = 4 * S * D * 4
WB = D * F * 2

out = []
def e(s=""):
    out.append(s)
CUR = [None]
def I(s):
    if CUR[0] == "conv_kernel":
        if "cMFMA" in ABL and s.startswith("v_mfma"): return
        if "cRD" in ABL and (s.startswith("ds_read_b64 v") or s.startswith("ds_read_b128")) and "v4 offset" not in s: return
        if "cKV" in ABL and s.startswith("buffer_load_dwordx2") and ("s[20:23]" in s or "s[24:27]" in s): return
        if "cST" in ABL and s.startswith("buffer_store"): return
    if CUR[0] in ("gemm1_kernel", "gemm2_kernel"):
        if "noDMA" in ABL and s.endswith(" lds"): return
        if "noA" in ABL and s.startswith("buffer_load_dwordx4 v[") : return
        if "noRD" in ABL and (s.startswith("ds_read_b64_tr") or "v20 offset" in s): return
        if "noMFMA" in ABL and s.startswith("v_mfma"): return
        if "noST" in ABL and s.startswith("buffer_store"): return
        if "noVALU" in ABL and s.split()[0] in ("v_exp_f32","v_rcp_f32","v_mul_f32","v_add_f32","v_cvt_pk_bf16_f32","ds_write_b128","ds_read_b128"): return
        if "noBAR" in ABL and s.startswith("s_barrier"): return
        if ("noDMA" in ABL or "noA" in ABL) and s.startswith("s_waitcnt vmcnt"): s = "s_waitcnt vmcnt(0)" if False else "s_nop 0"
    out.append("    " + s)
def nop(n):
    I(f"s_nop {n}")

def kernel_begin(name, nwg):
    CUR[0] = name
    e(f".globl {name}")
    e(".p2align 8")
    e(f".type {name},@function")
    e(f"{name}:")
    I(f"s_cmp_ge_u32 s2, {nwg}")
    I(f"s_cbranch_scc1 {name}_done")

def kernel_end(name):
    e(f"{name}_done:")
    I("s_endpgm")

def descriptor(name, vgpr, sgpr=96):
    e(f".amdhsa_kernel {name}")
    e(f"  .amdhsa_next_free_vgpr {vgpr}")
    e(f"  .amdhsa_next_free_sgpr {sgpr}")
    e(f"  .amdhsa_accum_offset {(vgpr + 3) // 4 * 4}")
    e("  .amdhsa_group_segment_fixed_size 0")
    e("  .amdhsa_kernarg_size 104")
    e("  .amdhsa_user_sgpr_count 2")
    e("  .amdhsa_user_sgpr_kernarg_segment_ptr 1")
    e("  .amdhsa_system_sgpr_workgroup_id_x 1")
    e(".end_amdhsa_kernel")

def srd(dst, lo, hi, nbytes, off=0):
    if off:
        I(f"s_add_u32 s{dst}, s{lo}, {off:#x}")
        I(f"s_addc_u32 s{dst+1}, s{hi}, 0")
    else:
        I(f"s_mov_b32 s{dst}, s{lo}")
        I(f"s_mov_b32 s{dst+1}, s{hi}")
    I(f"s_mov_b32 s{dst+2}, {nbytes:#x}")
    I(f"s_mov_b32 s{dst+3}, 0x00020000")

def rnd2(a, b, tmp, mask):
    I(f"v_cvt_pk_bf16_f32 v{tmp}, v{a}, v{b}")
    I(f"v_lshlrev_b32 v{a}, 16, v{tmp}")
    I(f"v_and_b32 v{b}, s{mask}, v{tmp}")

def row_kernel(name, mode):
    kernel_begin(name, 512)
    I("s_load_dwordx2 s[4:5], s[0:1], 0")
    I("s_load_dwordx2 s[6:7], s[0:1], 80")
    I("s_load_dwordx2 s[8:9], s[0:1], 96")
    I("s_mov_b32 s40, 0xffff0000")
    I("v_lshrrev_b32 v1, 4, v0")
    I("s_lshl_b32 s3, s2, 2")
    I("v_add_u32 v1, s3, v1")
    I("v_and_b32 v2, 15, v0")
    I("s_movk_i32 s41, 1152")
    I("v_mul_lo_u32 v3, v1, s41")
    I("v_lshl_add_u32 v3, v2, 3, v3")
    I("v_lshlrev_b32 v4, 1, v3")
    I("s_waitcnt lgkmcnt(0)")
    if mode == 'A':
        srd(12, 4, 5, XB)
    elif mode == 'B':
        srd(12, 8, 9, XB, WS_X1)
    else:
        srd(12, 8, 9, XB, WS_X3)
    srd(16, 8, 9, XB, WS_Y)
    srd(20, 8, 9, PB, WS_P)
    if mode == 'A':
        srd(24, 8, 9, XB, WS_X1)
    elif mode == 'B':
        srd(24, 8, 9, XB, WS_X3)
    else:
        srd(24, 6, 7, XB)
    srd(28, 8, 9, XB, WS_XN)
    X = 10
    Yr = 46
    L = 82
    L2 = 100
    PT = 120
    for i in range(9):
        I(f"buffer_load_dwordx2 v[{L+2*i}:{L+2*i+1}], v3, s[12:15], 0 offen offset:{i*128}")
    if mode != 'C':
        for i in range(9):
            I(f"buffer_load_dwordx2 v[{L2+2*i}:{L2+2*i+1}], v3, s[16:19], 0 offen offset:{i*128}")
    if mode != 'A':
        for z in range(3):
            I(f"s_mov_b32 s42, {z*S*D*4:#x}")
            for i in range(9):
                I(f"buffer_load_dwordx4 v[{PT+36*z+4*i}:{PT+36*z+4*i+3}], v4, s[20:23], s42 offen offset:{i*256}")
    I("s_waitcnt vmcnt(0)" )
    for i in range(9):
        I(f"v_lshlrev_b32 v{X+4*i}, 16, v{L+2*i}")
        I(f"v_and_b32 v{X+4*i+1}, s40, v{L+2*i}")
        I(f"v_lshlrev_b32 v{X+4*i+2}, 16, v{L+2*i+1}")
        I(f"v_and_b32 v{X+4*i+3}, s40, v{L+2*i+1}")
    if mode != 'C':
        for i in range(9):
            I(f"v_lshlrev_b32 v{Yr+4*i}, 16, v{L2+2*i}")
            I(f"v_and_b32 v{Yr+4*i+1}, s40, v{L2+2*i}")
            I(f"v_lshlrev_b32 v{Yr+4*i+2}, 16, v{L2+2*i+1}")
            I(f"v_and_b32 v{Yr+4*i+3}, s40, v{L2+2*i+1}")
    if mode != 'A':
        for i in range(36):
            I(f"v_add_f32 v{PT+i}, v{PT+i}, v{PT+36+i}")
        I(f"s_mov_b32 s42, {3*S*D*4:#x}")
        for i in range(9):
            I(f"buffer_load_dwordx4 v[{PT+36+4*i}:{PT+36+4*i+3}], v4, s[20:23], s42 offen offset:{i*256}")
        for i in range(36):
            I(f"v_add_f32 v{PT+i}, v{PT+i}, v{PT+72+i}")
        I("s_waitcnt vmcnt(0)")
        for i in range(36):
            I(f"v_add_f32 v{PT+i}, v{PT+i}, v{PT+36+i}")
        for i in range(0, 36, 2):
            rnd2(PT+i, PT+i+1, 5, 40)
        for i in range(36):
            I(f"v_add_f32 v{X+i}, v{X+i}, v{PT+i}")
        for i in range(0, 36, 2):
            if mode == 'C':
                I(f"v_cvt_pk_bf16_f32 v{L+i//2}, v{X+i}, v{X+i+1}")
            else:
                rnd2(X+i, X+i+1, 5, 40)
    if mode == 'C':
        for i in range(9):
            I(f"buffer_store_dwordx2 v[{L+2*i}:{L+2*i+1}], v3, s[24:27], 0 offen offset:{i*128}")
        I("s_waitcnt vmcnt(0)")
        kernel_end(name)
        return

    def rowsum(r):
        for sh in (8, 4, 2, 1):
            nop(1)
            I(f"v_add_f32_dpp v{r}, v{r}, v{r} row_ror:{sh} row_mask:0xf bank_mask:0xf")

    def layernorm(src, dst):
        I(f"v_add_f32 v5, v{src}, v{src+1}")
        for i in range(2, 36):
            I(f"v_add_f32 v5, v5, v{src+i}")
        rowsum(5)
        I("v_mul_f32 v5, 0x3ae38e39, v5")
        I("v_mov_b32 v6, 0")
        for i in range(36):
            I(f"v_sub_f32 v7, v{src+i}, v5")
            I("v_fmac_f32 v6, v7, v7")
        rowsum(6)
        I("v_mul_f32 v6, 0x3ae38e39, v6")
        rnd2(5, 6, 7, 40)
        I("v_add_f32 v6, 0x3727c5ac, v6")
        I("v_cvt_pk_bf16_f32 v7, v6, v6")
        I("v_lshlrev_b32 v6, 16, v7")
        I("v_sqrt_f32 v6, v6")
        nop(0)
        I("v_cvt_pk_bf16_f32 v7, v6, v6")
        I("v_lshlrev_b32 v6, 16, v7")
        I("v_rcp_f32 v6, v6")
        for i in range(36):
            I(f"v_sub_f32 v{dst+i}, v{src+i}, v5")
        for i in range(0, 36, 2):
            rnd2(dst+i, dst+i+1, 7, 40)
        for i in range(36):
            I(f"v_mul_f32 v{dst+i}, v{dst+i}, v6")
        for i in range(0, 36, 2):
            rnd2(dst+i, dst+i+1, 7, 40)

    N = 120
    layernorm(X, N)
    for i in range(36):
        I(f"v_mul_f32 v{N+i}, v{N+i}, v{Yr+i}")
    for i in range(0, 36, 2):
        rnd2(N+i, N+i+1, 7, 40)
    for i in range(36):
        I(f"v_add_f32 v{X+i}, v{X+i}, v{N+i}")
    for i in range(0, 36, 2):
        I(f"v_cvt_pk_bf16_f32 v{L+i//2}, v{X+i}, v{X+i+1}")
        I(f"v_lshlrev_b32 v{X+i}, 16, v{L+i//2}")
        I(f"v_and_b32 v{X+i+1}, s40, v{L+i//2}")
    for i in range(9):
        I(f"buffer_store_dwordx2 v[{L+2*i}:{L+2*i+1}], v3, s[24:27], 0 offen offset:{i*128}")
    layernorm(X, N)
    for i in range(0, 36, 2):
        I(f"v_cvt_pk_bf16_f32 v{L2+i//2}, v{N+i}, v{N+i+1}")
    for i in range(9):
        I(f"buffer_store_dwordx2 v[{L2+2*i}:{L2+2*i+1}], v3, s[28:31], 0 offen offset:{i*128}")
    I("s_waitcnt vmcnt(0)")
    kernel_end(name)

CSTR = 5120 + 64
CHS = 4 * CSTR
USZ = 128 * 80
UB = 0
HC = 4 * USZ
CONV_LDS = HC + 4 * CHS
YS = HC
Z = 2051

def conv_kernel(name):
    kernel_begin(name, 144)
    I("s_load_dwordx4 s[4:7], s[0:1], 8")
    I("s_load_dwordx4 s[8:11], s[0:1], 24")
    I("s_load_dwordx2 s[12:13], s[0:1], 40")
    I("s_load_dwordx2 s[14:15], s[0:1], 96")
    I("s_mov_b32 s40, 0xffff0000")
    I("s_mov_b32 s41, 0xffff")
    I("s_waitcnt lgkmcnt(0)")
    I("s_lshl_b32 s3, s2, 5")
    I("s_add_u32 s16, s8, s3")
    I("s_addc_u32 s17, s9, 0")
    I("s_load_dwordx8 s[44:51], s[16:17], 0")
    I("s_lshl_b32 s3, s2, 3")
    I("s_add_u32 s16, s12, s3")
    I("s_addc_u32 s17, s13, 0")
    I("s_load_dwordx2 s[52:53], s[16:17], 0")
    srd(20, 4, 5, XB)
    srd(24, 6, 7, XB)
    srd(32, 14, 15, XB, WS_Y)
    I("v_lshrrev_b32 v1, 6, v0")
    nop(0)
    I("v_readfirstlane_b32 s42, v1")
    nop(3)
    I("s_lshl_b32 s3, s2, 2")
    I("s_add_u32 s3, s3, s42")
    I("s_lshl_b32 s3, s3, 12")
    I("s_add_u32 s28, s10, s3")
    I("s_addc_u32 s29, s11, 0")
    I("s_mov_b32 s30, 4096")
    I("s_mov_b32 s31, 0x00020000")
    I("v_and_b32 v2, 63, v0")
    I("v_lshlrev_b32 v3, 4, v2")
    I("v_sub_u32 v3, 4080, v3")
    HL = 100
    for it in range(5):
        if it:
            I(f"v_subrev_u32 v4, {1024*it}, v3")
        a = "v4" if it else "v3"
        I(f"buffer_load_dwordx4 v[{HL+6*it}:{HL+6*it+3}], {a}, s[28:31], 0 offen")
        I(f"buffer_load_dwordx2 v[{HL+6*it+4}:{HL+6*it+5}], {a}, s[28:31], 0 offen offset:16")
    I("s_movk_i32 s43, 1152")
    I("v_lshlrev_b32 v5, 3, v0")
    I("v_subrev_u32 v5, 3, v5")
    I("v_mul_lo_u32 v5, v5, s43")
    I("s_lshl_b32 s3, s2, 3")
    I("v_add_u32 v5, s3, v5")
    KL = 130
    VL = 152
    for r in range(11):
        if r:
            I(f"v_add_u32 v6, {1152*r}, v5")
        a = "v6" if r else "v5"
        I(f"buffer_load_dwordx2 v[{KL+2*r}:{KL+2*r+1}], {a}, s[20:23], 0 offen")
    for r in range(8):
        I(f"v_add_u32 v6, {1152*(r+3)}, v5")
        I(f"buffer_load_dwordx2 v[{VL+2*r}:{VL+2*r+1}], v6, s[24:27], 0 offen")
    I("v_mov_b32 v8, 0")
    I("v_mov_b32 v9, 0")
    I("v_mov_b32 v10, 0")
    I("v_mov_b32 v11, 0")
    I("v_lshrrev_b32 v12, 6, v0")
    I(f"s_movk_i32 s3, {USZ}")
    I("v_mul_lo_u32 v12, v12, s3")
    I("v_lshl_add_u32 v12, v2, 4, v12")
    for it in range(5):
        I(f"ds_write_b128 v12, v[8:11] offset:{UB + 1024*it}")
    I("s_waitcnt lgkmcnt(0)")
    for ch in range(4):
        I(f"s_lshl_b32 s{56+4*ch}, s{44+2*ch}, 16")
        I(f"s_and_b32 s{57+4*ch}, s{44+2*ch}, s40")
        I(f"s_lshl_b32 s{58+4*ch}, s{45+2*ch}, 16")
        I(f"s_and_b32 s{59+4*ch}, s{45+2*ch}, s40")
    I("s_lshl_b32 s72, s52, 16")
    I("s_and_b32 s73, s52, s40")
    I("s_lshl_b32 s74, s53, 16")
    I("s_and_b32 s75, s53, s40")
    I("s_waitcnt vmcnt(19)")
    I(f"s_movk_i32 s3, {CHS}")
    I("s_mul_i32 s3, s3, s42")
    I("v_lshlrev_b32 v13, 4, v2")
    I("v_add_u32 v13, s3, v13")
    for it in range(5):
        w = lambda i: HL + 6*it + i
        for a in range(4):
            for q in range(4):
                d = 14 + 4*a + q
                if a == 0:
                    I(f"v_alignbit_b32 v{d}, v{w(5-q)}, v{w(5-q)}, 16")
                elif a == 1:
                    I(f"v_bfi_b32 v{d}, s41, v{w(5-q)}, v{w(4-q)}")
                elif a == 2:
                    I(f"v_alignbit_b32 v{d}, v{w(4-q)}, v{w(4-q)}, 16")
                else:
                    I(f"v_bfi_b32 v{d}, s41, v{w(4-q)}, v{w(3-q)}")
        for a in range(4):
            I(f"ds_write_b128 v13, v[{14+4*a}:{17+4*a}] offset:{HC + a*CSTR + 1024*it}")
    I("s_waitcnt vmcnt(0)")
    KF = 30
    VF = 74
    for r in range(11):
        I(f"v_lshlrev_b32 v{KF+4*r}, 16, v{KL+2*r}")
        I(f"v_and_b32 v{KF+4*r+1}, s40, v{KL+2*r}")
        I(f"v_lshlrev_b32 v{KF+4*r+2}, 16, v{KL+2*r+1}")
        I(f"v_and_b32 v{KF+4*r+3}, s40, v{KL+2*r+1}")
    I("v_lshrrev_b32 v12, 2, v0")
    I("v_mul_u32_u24 v12, 80, v12")
    I("v_and_b32 v13, 3, v0")
    I("v_lshl_add_u32 v12, v13, 4, v12")
    for ch in range(4):
        for sp in range(4):
            A0, A1, T0, T1, TMP = 80, 81, 82, 83, 84
            for t in range(4):
                wsg = 56 + 4*ch + 3 - t
                d0, d1 = (A0, A1) if t == 0 else (T0, T1)
                I(f"v_mul_f32 v{d0}, s{wsg}, v{KF+4*(2*sp+t)+ch}")
                I(f"v_mul_f32 v{d1}, s{wsg}, v{KF+4*(2*sp+1+t)+ch}")
                rnd2(d0, d1, TMP, 40)
                if t:
                    I(f"v_add_f32 v{A0}, v{A0}, v{T0}")
                    I(f"v_add_f32 v{A1}, v{A1}, v{T1}")
                    rnd2(A0, A1, TMP, 40)
            for k2, rr in ((T0, 2*sp), (T1, 2*sp+1)):
                src = VL + 2*rr + (ch >> 1)
                if ch & 1:
                    I(f"v_and_b32 v{k2}, s40, v{src}")
                else:
                    I(f"v_lshlrev_b32 v{k2}, 16, v{src}")
            I(f"v_mul_f32 v{A0}, v{A0}, v{T0}")
            I(f"v_mul_f32 v{A1}, v{A1}, v{T1}")
            I(f"v_cvt_pk_bf16_f32 v{88+sp}, v{A0}, v{A1}")
        I(f"ds_write_b128 v12, v[88:91] offset:{UB + ch*USZ + 64*80}")
    I("s_waitcnt lgkmcnt(0)")
    I("s_barrier")
    I("v_and_b32 v3, 31, v2")
    I("v_lshrrev_b32 v4, 5, v2")
    I(f"v_sub_u32 v5, {Z}, v3")
    I("v_and_b32 v6, 3, v5")
    I("v_sub_u32 v5, v5, v6")
    I("v_lshl_add_u32 v5, v4, 3, v5")
    I(f"v_subrev_u32 v5, {32*63}, v5")
    I("v_lshlrev_b32 v5, 1, v5")
    I(f"v_mul_u32_u24 v6, {CSTR}, v6")
    I("v_add_u32 v5, v5, v6")
    I(f"s_movk_i32 s3, {CHS}")
    I("s_mul_i32 s3, s3, s42")
    I(f"s_add_u32 s3, s3, {HC}")
    I("v_add_u32 v5, s3, v5")
    I("v_add_u32 v6, 1, v3")
    I("v_mul_u32_u24 v6, 80, v6")
    I("v_lshl_add_u32 v6, v4, 4, v6")
    I(f"s_movk_i32 s3, {USZ}")
    I("s_mul_i32 s3, s3, s42")
    I(f"s_add_u32 s3, s3, {UB}")
    I("v_add_u32 v6, s3, v6")
    ACC = 64
    for i in range(32):
        I(f"v_mov_b32 v{ACC+i}, 0")
    steps = [(m, ks) for m in range(64) for ks in range(2)]
    RING = 4
    RB = 96
    def nreads(st):
        return 4 if st[0] < 32 else 3
    def issue(i):
        m, ks = steps[i]
        b = RB + 12 * (i % RING)
        offA = (32*(63-m) + 16*ks) * 2
        I(f"ds_read_b64 v[{b}:{b+1}], v5 offset:{offA}")
        I(f"ds_read_b64 v[{b+2}:{b+3}], v5 offset:{offA+8}")
        I(f"ds_read_b128 v[{b+8}:{b+11}], v6 offset:{(63-m+32)*80 + 32*ks}")
        if m < 32:
            I(f"ds_read_b128 v[{b+4}:{b+7}], v6 offset:{(63-m)*80 + 32*ks}")
    LA = 2
    for i in range(LA):
        issue(i)
    for i in range(len(steps)):
        if i + LA < len(steps):
            issue(i + LA)
        pend = sum(nreads(steps[j]) for j in range(i+1, min(i+LA+1, len(steps))))
        I(f"s_waitcnt lgkmcnt({pend})")
        b = RB + 12 * (i % RING)
        m, ks = steps[i]
        I(f"v_mfma_f32_32x32x16_bf16 v[{ACC+16}:{ACC+31}], v[{b}:{b+3}], v[{b+8}:{b+11}], v[{ACC+16}:{ACC+31}]")
        if m < 32:
            I(f"v_mfma_f32_32x32x16_bf16 v[{ACC}:{ACC+15}], v[{b}:{b+3}], v[{b+4}:{b+7}], v[{ACC}:{ACC+15}]")
    nop(15)
    I("s_barrier")
    I("v_mul_u32_u24 v7, 264, v3")
    I("v_lshl_add_u32 v7, v4, 5, v7")
    I("s_lshl_b32 s3, s42, 1")
    I("v_add_u32 v7, s3, v7")
    for pb in range(2):
        for i in range(0, 16, 2):
            I(f"v_cvt_pk_bf16_f32 v8, v{ACC+16*pb+i}, v{ACC+16*pb+i+1}")
            r0 = 8*(i >> 2) + (i & 3)
            off = YS + pb*32*264 + r0*8
            I(f"ds_write_b16 v7, v8 offset:{off}")
            I(f"ds_write_b16_d16_hi v7, v8 offset:{off+8}")
    I("s_waitcnt lgkmcnt(0)")
    I("s_barrier")
    I("v_lshrrev_b32 v3, 5, v0")
    I("v_lshlrev_b32 v4, 3, v0")
    I("v_lshl_add_u32 v4, v3, 3, v4")
    I("v_mul_u32_u24 v5, 80, v3")
    I("v_and_b32 v6, 31, v0")
    I("v_lshl_add_u32 v5, v6, 1, v5")
    I("v_mul_u32_u24 v6, 1152, v0")
    I("s_lshl_b32 s3, s2, 3")
    I("v_add_u32 v6, s3, v6")
    for i in range(8):
        I(f"ds_read_b64 v[10:11], v4 offset:{YS + i*8*264}")
        for ch in range(4):
            I(f"ds_read_u16 v{12+ch}, v5 offset:{UB + ch*USZ + (64 + 8*i)*80}")
        I("s_waitcnt lgkmcnt(0)")
        for ch in range(4):
            I(f"v_lshlrev_b32 v{12+ch}, 16, v{12+ch}")
            I(f"v_mul_f32 v{12+ch}, s{72+ch}, v{12+ch}")
        rnd2(12, 13, 16, 40)
        rnd2(14, 15, 16, 40)
        I("v_lshlrev_b32 v17, 16, v10")
        I("v_and_b32 v18, s40, v10")
        I("v_lshlrev_b32 v19, 16, v11")
        I("v_and_b32 v20, s40, v11")
        for ch in range(4):
            I(f"v_add_f32 v{12+ch}, v{12+ch}, v{17+ch}")
        I("v_cvt_pk_bf16_f32 v22, v12, v13")
        I("v_cvt_pk_bf16_f32 v23, v14, v15")
        if i:
            I(f"v_add_u32 v6, {256*1152}, v6")
        I("buffer_store_dwordx2 v[22:23], v6, s[32:35], 0 offen")
        nop(1)
    I("s_waitcnt vmcnt(0)")
    kernel_end(name)

STG = 36864
NSLOT = 4
GEMM_LDS = NSLOT * STG

class VmQueue:
    def __init__(self):
        self.q = []
    def push(self, tag):
        self.q.append(tag)
    def wait_for(self, tags):
        last = -1
        for i, t in enumerate(self.q):
            if t in tags:
                last = i
        n = len(self.q) - 1 - last
        I(f"s_waitcnt vmcnt({n})")
        self.q = self.q[last+1:]

def gemm1_kernel(name):
    kernel_begin(name, 256)
    I("s_load_dwordx4 s[4:7], s[0:1], 56")
    I("s_load_dwordx2 s[8:9], s[0:1], 96")
    I("s_and_b32 s3, s2, 7")
    I("s_lshr_b32 s44, s2, 3")
    I("s_and_b32 s45, s44, 7")
    I("s_lshr_b32 s44, s44, 3")
    I("s_lshl_b32 s3, s3, 2")
    I("s_add_u32 s46, s3, s44")
    I("v_lshrrev_b32 v1, 6, v0")
    I("v_and_b32 v2, 63, v0")
    I("v_readfirstlane_b32 s42, v1")
    I("s_waitcnt lgkmcnt(0)")
    srd(12, 4, 5, WB)
    srd(16, 6, 7, WB)
    srd(20, 8, 9, XB, WS_XN)
    srd(24, 8, 9, HB, WS_H)
    I("s_mul_i32 s47, s46, 288")
    I("s_lshl_b32 s48, s45, 8")
    I("s_lshl_b32 s3, s42, 5")
    I("s_add_u32 s48, s48, s3")
    I("v_and_b32 v3, 15, v2")
    I("v_lshrrev_b32 v4, 4, v2")
    I("v_add_u32 v5, s48, v3")
    I("s_movk_i32 s3, 1152")
    I("v_mul_lo_u32 v10, v5, s3")
    I("v_lshl_add_u32 v10, v4, 4, v10")
    I("v_add_u32 v11, 18432, v10")
    I("s_movk_i32 s3, 9216")
    I("v_mul_lo_u32 v12, v5, s3")
    I("v_lshl_add_u32 v12, v4, 3, v12")
    I("v_add_u32 v12, s47, v12")
    I(f"v_add_u32 v13, {16*9216}, v12")
    I("v_lshlrev_b32 v5, 3, v3")
    I("v_lshl_add_u32 v5, v4, 12, v5")
    I("v_and_b32 v6, 1, v4")
    I("v_lshl_add_u32 v14, v6, 7, v5")
    I("v_xor_b32 v6, 1, v6")
    I("v_lshl_add_u32 v15, v6, 7, v5")
    I("v_lshlrev_b32 v16, 3, v2")
    I("v_lshrrev_b32 v5, 5, v2")
    I("v_lshlrev_b32 v5, 2, v5")
    I("v_bfe_u32 v6, v2, 1, 2")
    I("v_add_u32 v5, v5, v6")
    I("s_movk_i32 s3, 9216")
    I("v_mul_lo_u32 v5, v5, s3")
    I("v_bfe_u32 v6, v2, 4, 1")
    I("v_lshl_add_u32 v5, v6, 6, v5")
    I("v_bfe_u32 v6, v2, 3, 1")
    I("s_and_b32 s3, s42, 1")
    I("v_xor_b32 v6, s3, v6")
    I("v_lshl_add_u32 v5, v6, 5, v5")
    I("v_and_b32 v6, 1, v2")
    I("v_lshl_add_u32 v17, v6, 4, v5")
    I("v_lshrrev_b32 v5, 5, v2")
    I("v_lshlrev_b32 v5, 2, v5")
    I("v_bfe_u32 v6, v2, 3, 2")
    I("v_lshl_add_u32 v5, v6, 3, v5")
    I("v_bfe_u32 v6, v2, 1, 2")
    I("v_add_u32 v5, v5, v6")
    I("s_movk_i32 s3, 9216")
    I("v_mul_lo_u32 v5, v5, s3")
    I("v_and_b32 v6, 1, v2")
    I("v_lshl_add_u32 v18, v6, 4, v5")
    I("s_mul_i32 s50, s42, 73728")
    I("s_add_u32 s50, s50, s47")
    I("s_and_b32 s51, s42, 3")
    I("s_lshr_b32 s3, s51, 1")
    I("s_mul_i32 s52, s3, 294912")
    I("s_add_u32 s52, s52, s47")
    I("s_add_u32 s52, s52, 256")
    I("s_and_b32 s3, s51, 1")
    I("s_cmp_eq_u32 s3, 0")
    I("s_cselect_b32 s28, s12, s16")
    I("s_cselect_b32 s29, s13, s17")
    I("s_mov_b32 s30, s14")
    I("s_mov_b32 s31, s15")
    I("s_lshl_b32 s53, s42, 12")
    I("s_lshl_b32 s54, s51, 10")
    I("s_add_u32 s54, s54, 32768")
    ACC, AR, BR = 112, 64, 40
    for i in range(144):
        I(f"v_mov_b32 v{ACC+i}, 0")
    vq = VmQueue()
    def issueA(st):
        b = AR + 16 * (st % 3)
        ops = []
        for ks in range(2):
            for mb in range(2):
                r = b + 8*ks + 4*mb
                ops.append(f"buffer_load_dwordx4 v[{r}:{r+3}], v{10+mb}, s[20:23], s55 offen offset:{64*ks}")
        return [(f"s_movk_i32 s55, {128*st}", None)] + [(o, ('A', st)) for o in ops]
    def issueD(st):
        slot = (st % NSLOT) * STG
        ops = []
        for mat in range(2):
            for Q in range(2):
                ops.append((f"s_add_u32 m0, s53, {slot + (2*mat+Q)*1024}", None))
                ops.append((f"s_add_u32 s56, s50, {st*64*9216 + 128*Q}", None))
                ops.append((f"buffer_load_dwordx4 v17, s[{12+4*mat}:{15+4*mat}], s56 offen lds", ('D', st)))
        ops.append((f"s_add_u32 m0, s54, {slot}", None))
        ops.append((f"s_add_u32 s56, s52, {st*64*9216}", None))
        ops.append((f"buffer_load_dwordx4 v18, s[28:31], s56 offen lds", ('D', st)))
        return ops
    def emit_ops(ops):
        for o, tag in ops:
            I(o)
            if tag:
                vq.push(tag)
    emit_ops(issueA(0)); emit_ops(issueD(0)); emit_ops(issueA(1)); emit_ops(issueD(1)); emit_ops(issueD(2))
    NST = 9
    RING, LA = 6, 4
    for st in range(NST):
        slot = (st % NSLOT) * STG
        vq.wait_for({('A', st), ('D', st)})
        I("s_barrier")
        I(f"v_add_u32 v20, {slot}, v14")
        I(f"v_add_u32 v21, {slot}, v15")
        I(f"v_add_u32 v22, {slot}, v16")
        side = []
        if st + 2 < NST:
            side += issueA(st + 2)
        if st + 3 < NST:
            side += issueD(st + 3)
        frags = [(ks, t, mat) for ks in range(2) for t in range(9) for mat in range(2)]
        def rd(fi):
            ks, t, mat = frags[fi]
            b = BR + 4 * (fi % RING)
            for j in range(2):
                if t < 8:
                    tt = t & 3
                    off = ks*16384 + mat*2048 + (t >> 2)*1024 + 256*(2*j + (tt >> 1))
                    a = 20 + (tt & 1)
                else:
                    off = 32768 + (2*ks + mat)*1024 + 512*j
                    a = 22
                I(f"ds_read_b64_tr_b16 v[{b+2*j}:{b+2*j+1}], v{a} offset:{off}")
        for fi in range(LA):
            rd(fi)
        for fi in range(36):
            if fi + LA < 36:
                rd(fi + LA)
            pend = 2 * min(LA, 35 - fi)
            I(f"s_waitcnt lgkmcnt({pend})")
            ks, t, mat = frags[fi]
            b = BR + 4 * (fi % RING)
            for mb in range(2):
                acc = ACC + ((mat*9 + t)*2 + mb) * 4
                ar = AR + 16*(st % 3) + 8*ks + 4*mb
                I(f"v_mfma_f32_16x16x32_bf16 v[{acc}:{acc+3}], v[{b}:{b+3}], v[{ar}:{ar+3}], v[{acc}:{acc+3}]")
            if side and fi >= 1:
                chunk, side = side[:3], side[3:]
                emit_ops(chunk)
        emit_ops(side)
    nop(15)
    I("s_mov_b32 s60, 0xbfb8aa3b")
    for mb in range(2):
        for t in range(9):
            g = ACC + ((0*9 + t)*2 + mb)*4
            u = ACC + ((1*9 + t)*2 + mb)*4
            T = 24
            for i in range(4):
                I(f"v_mul_f32 v{T+i}, s60, v{g+i}")
            for i in range(4):
                I(f"v_exp_f32 v{T+i}, v{T+i}")
            for i in range(4):
                I(f"v_mul_f32 v{g+i}, v{g+i}, v{u+i}")
            for i in range(4):
                I(f"v_add_f32 v{T+i}, 1.0, v{T+i}")
            for i in range(4):
                I(f"v_rcp_f32 v{T+i}, v{T+i}")
            nop(0)
            for i in range(4):
                I(f"v_mul_f32 v{g+i}, v{g+i}, v{T+i}")
            I(f"v_cvt_pk_bf16_f32 v{u}, v{g}, v{g+1}")
            I(f"v_cvt_pk_bf16_f32 v{u+1}, v{g+2}, v{g+3}")
            I(f"buffer_store_dwordx2 v[{u}:{u+1}], v{12+mb}, s[24:27], 0 offen offset:{32*t}")
    I("s_waitcnt vmcnt(0)")
    kernel_end(name)

def gemm2_kernel(name):
    kernel_begin(name, 256)
    I("s_load_dwordx2 s[4:5], s[0:1], 72")
    I("s_load_dwordx2 s[8:9], s[0:1], 96")
    I("s_and_b32 s3, s2, 7")
    I("s_lshr_b32 s44, s2, 3")
    I("s_and_b32 s46, s44, 3")
    I("s_bfe_u32 s49, s44, 0x20002")
    I("s_lshr_b32 s44, s44, 4")
    I("s_lshl_b32 s3, s3, 1")
    I("s_add_u32 s45, s3, s44")
    I("v_lshrrev_b32 v1, 6, v0")
    I("v_and_b32 v2, 63, v0")
    I("v_readfirstlane_b32 s42, v1")
    I("s_waitcnt lgkmcnt(0)")
    srd(12, 4, 5, WB)
    srd(20, 8, 9, HB, WS_H)
    srd(24, 8, 9, PB, WS_P)
    I("s_mul_i32 s47, s46, 288")
    I("s_lshl_b32 s48, s45, 7")
    I("s_and_b32 s3, s42, 1")
    I("s_lshl_b32 s3, s3, 6")
    I("s_add_u32 s48, s48, s3")
    I("s_lshr_b32 s43, s42, 1")
    I("s_mul_i32 s57, s49, 1152")
    I("s_mul_i32 s3, s43, 288")
    I("s_add_u32 s57, s57, s3")
    I("s_lshl_b32 s58, s57, 1")
    I("v_and_b32 v3, 15, v2")
    I("v_lshrrev_b32 v4, 4, v2")
    I("v_add_u32 v5, s48, v3")
    I("s_movk_i32 s3, 9216")
    I("v_mul_lo_u32 v10, v5, s3")
    I("v_lshl_add_u32 v10, v4, 4, v10")
    for mb in range(1, 4):
        I(f"v_add_u32 v{10+mb}, {mb*16*9216}, v10")
    I("s_movk_i32 s3, 2304")
    I("v_mul_lo_u32 v28, v5, s3")
    I("v_lshl_add_u32 v28, v4, 4, v28")
    I(f"s_mul_i32 s3, s49, {S*D*4}")
    I("s_lshl_b32 s59, s47, 1")
    I("s_add_u32 s3, s3, s59")
    I("v_add_u32 v28, s3, v28")
    for mb in range(1, 4):
        I(f"v_add_u32 v{28+mb}, {mb*16*2304}, v28")
    I("v_lshlrev_b32 v5, 3, v3")
    I("v_lshl_add_u32 v5, v4, 11, v5")
    I("s_lshl_b32 s3, s43, 13")
    I("v_add_u32 v5, s3, v5")
    I("v_and_b32 v6, 1, v4")
    I("v_lshl_add_u32 v14, v6, 7, v5")
    I("v_xor_b32 v6, 1, v6")
    I("v_lshl_add_u32 v15, v6, 7, v5")
    I("v_lshlrev_b32 v16, 3, v2")
    I("s_lshl_b32 s3, s43, 10")
    I("v_add_u32 v16, s3, v16")
    I("v_lshrrev_b32 v5, 5, v2")
    I("v_lshlrev_b32 v5, 2, v5")
    I("v_bfe_u32 v6, v2, 1, 2")
    I("v_add_u32 v5, v5, v6")
    I("v_mul_u32_u24 v5, 1152, v5")
    I("v_bfe_u32 v6, v2, 4, 1")
    I("v_lshl_add_u32 v5, v6, 6, v5")
    I("v_bfe_u32 v6, v2, 3, 1")
    I("s_and_b32 s3, s42, 1")
    I("v_xor_b32 v6, s3, v6")
    I("v_lshl_add_u32 v5, v6, 5, v5")
    I("v_and_b32 v6, 1, v2")
    I("v_lshl_add_u32 v17, v6, 4, v5")
    I("v_lshrrev_b32 v5, 5, v2")
    I("v_lshlrev_b32 v5, 2, v5")
    I("v_bfe_u32 v6, v2, 3, 2")
    I("v_lshl_add_u32 v5, v6, 3, v5")
    I("v_bfe_u32 v6, v2, 1, 2")
    I("v_add_u32 v5, v5, v6")
    I("v_mul_u32_u24 v5, 1152, v5")
    I("v_and_b32 v6, 1, v2")
    I("v_lshl_add_u32 v18, v6, 4, v5")
    I("s_and_b32 s51, s42, 3")
    I("s_lshr_b32 s3, s42, 2")
    I("s_lshl_b32 s61, s3, 1")
    I("s_mul_i32 s50, s49, 1152")
    I("s_mul_i32 s3, s61, 288")
    I("s_add_u32 s50, s50, s3")
    I("s_lshl_b32 s3, s51, 3")
    I("s_add_u32 s50, s50, s3")
    I("s_mul_i32 s50, s50, 1152")
    I("s_add_u32 s50, s50, s47")
    I("s_mul_i32 s52, s49, 1152")
    I("s_mul_i32 s3, s51, 288")
    I("s_add_u32 s52, s52, s3")
    I("s_mul_i32 s52, s52, 1152")
    I("s_add_u32 s52, s52, s47")
    I("s_add_u32 s52, s52, 256")
    I("s_lshl_b32 s53, s61, 2")
    I("s_add_u32 s53, s53, s51")
    I("s_lshl_b32 s53, s53, 11")
    I("s_lshl_b32 s54, s51, 10")
    I("s_add_u32 s54, s54, 32768")
    ACC, AR, BR = 112, 64, 40
    for i in range(144):
        I(f"v_mov_b32 v{ACC+i}, 0")
    vq = VmQueue()
    def issueA(st):
        b = AR + 16 * (st % 3)
        ops = [(f"s_add_u32 s55, s58, {64*st}", None)]
        for mb in range(4):
            r = b + 4*mb
            ops.append((f"buffer_load_dwordx4 v[{r}:{r+3}], v{10+mb}, s[20:23], s55 offen", ('A', st)))
        return ops
    def issueD(st):
        slot = (st % NSLOT) * STG
        ops = []
        for kk in range(2):
            for Q in range(2):
                ops.append((f"s_add_u32 m0, s53, {slot + kk*8192 + Q*1024}", None))
                ops.append((f"s_add_u32 s56, s50, {(st*32 + kk*288)*1152 + 128*Q}", None))
                ops.append((f"buffer_load_dwordx4 v17, s[12:15], s56 offen lds", ('D', st)))
        ops.append((f"s_add_u32 m0, s54, {slot}", None))
        ops.append((f"s_add_u32 s56, s52, {st*32*1152}", None))
        ops.append((f"buffer_load_dwordx4 v18, s[12:15], s56 offen lds", ('D', st)))
        return ops
    def emit_ops(ops):
        for o, tag in ops:
            I(o)
            if tag:
                vq.push(tag)
    emit_ops(issueA(0)); emit_ops(issueD(0)); emit_ops(issueA(1)); emit_ops(issueD(1)); emit_ops(issueD(2))
    NST = 9
    RING, LA = 6, 4
    for st in range(NST):
        slot = (st % NSLOT) * STG
        vq.wait_for({('A', st), ('D', st)})
        I("s_barrier")
        I(f"v_add_u32 v20, {slot}, v14")
        I(f"v_add_u32 v21, {slot}, v15")
        I(f"v_add_u32 v22, {slot}, v16")
        side = []
        if st + 2 < NST:
            side += issueA(st + 2)
        if st + 3 < NST:
            side += issueD(st + 3)
        def rd(t):
            b = BR + 4 * (t % RING)
            for j in range(2):
                if t < 8:
                    tt = t & 3
                    off = (t >> 2)*1024 + 256*(2*j + (tt >> 1))
                    a = 20 + (tt & 1)
                else:
                    off = 32768 + 512*j
                    a = 22
                I(f"ds_read_b64_tr_b16 v[{b+2*j}:{b+2*j+1}], v{a} offset:{off}")
        for t in range(LA):
            rd(t)
        for t in range(9):
            if t + LA < 9:
                rd(t + LA)
            pend = 2 * min(LA, 8 - t)
            I(f"s_waitcnt lgkmcnt({pend})")
            b = BR + 4 * (t % RING)
            for mb in range(4):
                acc = ACC + (t*4 + mb) * 4
                ar = AR + 16*(st % 3) + 4*mb
                I(f"v_mfma_f32_16x16x32_bf16 v[{acc}:{acc+3}], v[{b}:{b+3}], v[{ar}:{ar+3}], v[{acc}:{acc+3}]")
                if side:
                    chunk, side = side[:1], side[1:]
                    emit_ops(chunk)
        emit_ops(side)
    nop(15)
    I("s_barrier")
    I("v_lshlrev_b32 v5, 4, v2")
    I("s_and_b32 s3, s42, 3")
    I(f"s_mul_i32 s3, s3, {STG}")
    I("v_add_u32 v5, s3, v5")
    I("s_cmp_lt_u32 s42, 4")
    I(f"s_cbranch_scc1 {name}_r1")
    for i in range(36):
        I(f"ds_write_b128 v5, v[{ACC+4*i}:{ACC+4*i+3}] offset:{1024*i}")
    I("s_waitcnt lgkmcnt(0)")
    e(f"{name}_r1:")
    I("s_barrier")
    I("s_cmp_ge_u32 s42, 4")
    I(f"s_cbranch_scc1 {name}_r2")
    for i in range(36):
        I(f"ds_read_b128 v[{40+4*(i%8)}:{43+4*(i%8)}], v5 offset:{1024*i}")
        if i % 8 == 7 or i == 35:
            I("s_waitcnt lgkmcnt(0)")
            for i2 in range(i - i % 8, i + 1):
                for c in range(4):
                    I(f"v_add_f32 v{ACC+4*i2+c}, v{ACC+4*i2+c}, v{40+4*(i2%8)+c}")
    e(f"{name}_r2:")
    I("s_barrier")
    I("s_cmp_lt_u32 s42, 2")
    I(f"s_cbranch_scc1 {name}_r3")
    I("s_cmp_ge_u32 s42, 4")
    I(f"s_cbranch_scc1 {name}_r3")
    for i in range(36):
        I(f"ds_write_b128 v5, v[{ACC+4*i}:{ACC+4*i+3}] offset:{1024*i}")
    I("s_waitcnt lgkmcnt(0)")
    e(f"{name}_r3:")
    I("s_barrier")
    I("s_cmp_ge_u32 s42, 2")
    I(f"s_cbranch_scc1 {name}_done")
    I(f"v_add_u32 v5, {2*STG}, v5")
    for i in range(36):
        I(f"ds_read_b128 v[{40+4*(i%8)}:{43+4*(i%8)}], v5 offset:{1024*i}")
        if i % 8 == 7 or i == 35:
            I("s_waitcnt lgkmcnt(0)")
            for i2 in range(i - i % 8, i + 1):
                for c in range(4):
                    I(f"v_add_f32 v{ACC+4*i2+c}, v{ACC+4*i2+c}, v{40+4*(i2%8)+c}")
    for t in range(9):
        for mb in range(4):
            acc = ACC + (t*4 + mb)*4
            I(f"buffer_store_dwordx4 v[{acc}:{acc+3}], v{28+mb}, s[24:27], 0 offen offset:{64*t}")
    I("s_waitcnt vmcnt(0)")
    kernel_end(name)

def main(path):
    hdr = open("interleave_layers__ssm_conv_h3__glu_gated_swiglu__prompt.s.ref").read().split("\n")
    for l in hdr:
        if l.startswith(";") and "@launch" not in l:
            e(l)
    L = [("conv_kernel", 144, 256, CONV_LDS), ("rowa_kernel", 512, 64, 0),
         ("gemm1_kernel", 256, 512, GEMM_LDS), ("gemm2_kernel", 256, 512, GEMM_LDS),
         ("rowb_kernel", 512, 64, 0),
         ("gemm1_kernel", 256, 512, GEMM_LDS), ("gemm2_kernel", 256, 512, GEMM_LDS),
         ("rowc_kernel", 512, 64, 0)]
    for k, g, b, l in L:
        e(f"; @launch kernel={k} grid=({g},1,1) block=({b},1,1) lds={l}")
    e('.amdgcn_target "amdgcn-amd-amdhsa--gfx950"')
    e(".text")
    conv_kernel("conv_kernel")
    row_kernel("rowa_kernel", 'A')
    row_kernel("rowb_kernel", 'B')
    row_kernel("rowc_kernel", 'C')
    gemm1_kernel("gemm1_kernel")
    gemm2_kernel("gemm2_kernel")
    e('.section .rodata,"a"')
    for k, v in (("conv_kernel", 168), ("rowa_kernel", 232), ("rowb_kernel", 232), ("rowc_kernel", 232),
                 ("gemm1_kernel", 256), ("gemm2_kernel", 256)):
        e(".p2align 6")
        descriptor(k, v)
    open(path, "w").write("\n".join(out) + "\n")

if __name__ == "__main__":
    main(sys.argv[1] if len(sys.argv) > 1 else "interleave_layers__ssm_conv_h3__glu_gated_swiglu__prompt.s")
```

```python
import sys, os
sys.path.insert(0, "dev")
import gen as G
from gen import e, I, nop, srd, rnd2, kernel_begin, kernel_end, descriptor, VmQueue, out
from gen import S, D, F, XB, HB, PB, WB, WS_Y, WS_X1, WS_XN, WS_X3, WS_H, WS_P
WS_W13 = 0x5000000
WS_W2  = 0x6000000
W13B = 32*9*36*1024
W2B = 4*4*9*36*1024
STG = 36864
NSLOT = 4
GEMM_LDS = NSLOT * STG

def prep_kernel(name):
    e(f"{name}:")
    G.CUR[0] = name
    I("s_load_dwordx4 s[4:7], s[0:1], 56")
    I("s_load_dwordx2 s[10:11], s[0:1], 72")
    I("s_load_dwordx2 s[8:9], s[0:1], 96")
    I("v_lshrrev_b32 v1, 6, v0")
    I("v_and_b32 v2, 63, v0")
    I("v_readfirstlane_b32 s42, v1")
    I("v_and_b32 v3, 15, v2")
    I("v_lshrrev_b32 v4, 4, v2")
    I("v_lshlrev_b32 v5, 3, v3")
    I("v_lshl_add_u32 v5, v4, 10, v5")
    I("s_mul_i32 s53, s42, 5120")
    I("s_sub_u32 s2, s2, 144")
    I("s_lshl_b32 s2, s2, 2")
    I("s_add_u32 s2, s2, s42")
    I("s_and_b32 s42, s2, 7")
    I("s_lshr_b32 s2, s2, 3")
    I("v_add_u32 v5, s53, v5")
    I("v_and_b32 v6, 1, v4")
    I("v_lshl_add_u32 v14, v6, 7, v5")
    I("v_xor_b32 v6, 1, v6")
    I("v_lshl_add_u32 v15, v6, 7, v5")
    I("v_lshlrev_b32 v16, 3, v2")
    I("v_add_u32 v16, s53, v16")
    I("v_lshlrev_b32 v19, 4, v2")
    I("s_waitcnt lgkmcnt(0)")
    I("s_cmp_ge_u32 s2, 288")
    I(f"s_cbranch_scc1 {name}_w2")
    for which in (13, 2):
        if which == 2:
            e(f"{name}_w2:")
        pitch = 9216 if which == 13 else 1152
        I(f"s_movk_i32 s60, {pitch}")
        I("v_lshrrev_b32 v5, 5, v2")
        I("v_lshlrev_b32 v5, 2, v5")
        I("v_bfe_u32 v6, v2, 1, 2")
        I("v_add_u32 v5, v5, v6")
        I("v_mul_lo_u32 v5, v5, s60")
        I("v_bfe_u32 v6, v2, 4, 1")
        I("v_lshl_add_u32 v5, v6, 6, v5")
        I("v_and_b32 v6, 1, v2")
        I("v_lshl_add_u32 v5, v6, 4, v5")
        I("v_bfe_u32 v6, v2, 3, 1")
        I("v_lshl_add_u32 v17, v6, 5, v5")
        I("v_xor_b32 v6, 1, v6")
        I("v_lshl_add_u32 v18, v6, 5, v5")
        I("v_lshrrev_b32 v5, 5, v2")
        I("v_lshlrev_b32 v5, 2, v5")
        I("v_bfe_u32 v6, v2, 3, 2")
        I("v_lshl_add_u32 v5, v6, 3, v5")
        I("v_bfe_u32 v6, v2, 1, 2")
        I("v_add_u32 v5, v5, v6")
        I("v_mul_lo_u32 v5, v5, s60")
        I("v_and_b32 v6, 1, v2")
        I("v_lshl_add_u32 v20, v6, 4, v5")
        if which == 13:
            I("s_mul_hi_u32 s44, s2, 0x1c71c71d")
            I("s_mul_i32 s3, s44, 9")
            I("s_sub_u32 s45, s2, s3")
            I("s_lshr_b32 s46, s42, 2")
            I("s_bfe_u32 s47, s42, 0x10001")
            I("s_and_b32 s48, s42, 1")
            I("s_cmp_eq_u32 s47, 0")
            I("s_cselect_b32 s12, s4, s6")
            I("s_cselect_b32 s13, s5, s7")
            I(f"s_mov_b32 s14, {WB:#x}")
            I("s_mov_b32 s15, 0x00020000")
            srd(16, 8, 9, W13B, WS_W13)
            I("s_lshl_b32 s50, s45, 6")
            I("s_lshl_b32 s3, s46, 5")
            I("s_add_u32 s50, s50, s3")
            I("s_mul_i32 s50, s50, 9216")
            I("s_mul_i32 s3, s44, 288")
            I("s_add_u32 s50, s50, s3")
            I("s_lshl_b32 s3, s48, 7")
            I("s_add_u32 s51, s50, s3")
            I("s_add_u32 s52, s50, 256")
            I("s_mul_i32 s54, s44, 331776")
            I("s_lshl_b32 s3, s47, 10")
            I("s_add_u32 s54, s54, s3")
            I("s_mul_i32 s62, s45, 20480")
            I("s_add_u32 s62, s62, s54")
            I("s_mul_i32 s3, s46, 10240")
            I("s_add_u32 s62, s62, s3")
            I("s_lshl_b32 s63, s45, 14")
            I("s_add_u32 s63, s63, s54")
            I("s_lshl_b32 s3, s46, 13")
            I("s_add_u32 s63, s63, s3")
            I("s_add_u32 s63, s63, 184320")
            I("s_add_u32 s56, s63, 6144")
            for tt in range(4):
                I(f"s_add_u32 s3, s62, {tt*2048}")
                I(f"s_add_u32 s{64+tt}, s{62 if tt == 0 else 63}, {8192 if tt == 0 else (tt-1)*2048}")
                I("s_cmp_eq_u32 s48, 0")
                I(f"s_cselect_b32 s{64+tt}, s3, s{64+tt}")
            tstride = None
        else:
            I("s_sub_u32 s43, s2, 288")
            I("s_mul_hi_u32 s44, s43, 0x1c71c71d")
            I("s_mul_i32 s3, s44, 9")
            I("s_sub_u32 s45, s43, s3")
            I("s_and_b32 s46, s44, 3")
            I("s_lshr_b32 s44, s44, 2")
            I("s_lshr_b32 s47, s42, 1")
            I("s_and_b32 s48, s42, 1")
            srd(12, 10, 11, WB)
            srd(16, 8, 9, W2B, WS_W2)
            I("s_mul_i32 s50, s46, 1152")
            I("s_mul_i32 s3, s47, 288")
            I("s_add_u32 s50, s50, s3")
            I("s_lshl_b32 s3, s45, 5")
            I("s_add_u32 s50, s50, s3")
            I("s_mul_i32 s50, s50, 1152")
            I("s_mul_i32 s3, s44, 288")
            I("s_add_u32 s50, s50, s3")
            I("s_lshl_b32 s3, s48, 7")
            I("s_add_u32 s51, s50, s3")
            I("s_add_u32 s52, s50, 256")
            I("s_mul_i32 s54, s43, 36")
            I("s_mul_i32 s3, s47, 9")
            I("s_add_u32 s54, s54, s3")
            I("s_lshl_b32 s55, s54, 10")
            I("s_add_u32 s56, s55, 8192")
            I("s_lshl_b32 s3, s48, 12")
            I("s_add_u32 s55, s55, s3")
            tstride = 1024
        for sg in range(4):
            I(f"s_add_u32 m0, s53, {sg*1024}")
            I(f"s_add_u32 s57, s51, {sg*8*pitch}")
            I(f"buffer_load_dwordx4 v{17 + (sg & 1)}, s[12:15], s57 offen lds")
        I("s_add_u32 m0, s53, 4096")
        nop(0)
        I("buffer_load_dwordx4 v20, s[12:15], s52 offen lds")
        I("s_waitcnt vmcnt(0)")
        for tt in range(4):
            for j in range(2):
                I(f"ds_read_b64_tr_b16 v[{24+4*tt+2*j}:{25+4*tt+2*j}], v{14+(tt&1)} offset:{256*(2*j+(tt>>1))}")
        for j in range(2):
            I(f"ds_read_b64_tr_b16 v[{40+2*j}:{41+2*j}], v16 offset:{4096+512*j}")
        I("s_waitcnt lgkmcnt(0)")
        for tt in range(4):
            if tstride is None:
                I(f"buffer_store_dwordx4 v[{24+4*tt}:{27+4*tt}], v19, s[16:19], s{64+tt} offen")
            else:
                I(f"buffer_store_dwordx4 v[{24+4*tt}:{27+4*tt}], v19, s[16:19], s55 offen offset:{tt*tstride}")
        I("buffer_store_dwordx4 v[40:43], v19, s[16:19], s56 offen")
        I("s_waitcnt vmcnt(0)")
        I("s_endpgm")

def row_kernel(name, mode):
    kernel_begin(name, 128)
    I("s_load_dwordx2 s[4:5], s[0:1], 0")
    I("s_load_dwordx2 s[6:7], s[0:1], 80")
    I("s_load_dwordx2 s[8:9], s[0:1], 96")
    I("s_mov_b32 s40, 0xffff0000")
    I("v_lshrrev_b32 v1, 6, v0")
    I("v_and_b32 v2, 63, v0")
    I("v_readfirstlane_b32 s42, v1")
    I("v_and_b32 v5, 15, v2")
    I("v_lshrrev_b32 v6, 4, v2")
    I("s_lshl_b32 s3, s2, 4")
    I("v_add_u32 v3, s3, v5")
    I("s_movk_i32 s41, 1152")
    I("v_mul_lo_u32 v3, v3, s41")
    I("v_lshl_add_u32 v3, v6, 3, v3")
    I("s_mul_i32 s3, s42, 288")
    I("v_add_u32 v3, s3, v3")
    I("s_mul_i32 s3, s2, 36")
    I("s_mul_i32 s43, s42, 9")
    I("s_add_u32 s3, s3, s43")
    I("s_lshl_b32 s3, s3, 10")
    I("v_lshlrev_b32 v4, 4, v2")
    I("v_add_u32 v4, s3, v4")
    I("v_lshlrev_b32 v8, 4, v5")
    I("v_lshrrev_b32 v7, 1, v6")
    I("v_lshl_add_u32 v8, v7, 8, v8")
    I("v_and_b32 v7, 1, v6")
    I("v_lshl_add_u32 v8, v7, 3, v8")
    I("s_mul_i32 s3, s2, 18432")
    I("s_lshl_b32 s43, s43, 9")
    I("s_add_u32 s3, s3, s43")
    I("v_add_u32 v8, s3, v8")
    I("v_lshlrev_b32 v9, 4, v5")
    I("v_add_u32 v9, v9, v6")
    I("s_lshl_b32 s3, s42, 2")
    I("v_add_u32 v9, s3, v9")
    I("v_lshlrev_b32 v9, 2, v9")
    I("v_lshlrev_b32 v1, 6, v5")
    I("s_waitcnt lgkmcnt(0)")
    if mode == 'A':
        srd(12, 4, 5, XB)
    elif mode == 'B':
        srd(12, 8, 9, XB, WS_X1)
    else:
        srd(12, 8, 9, XB, WS_X3)
    srd(16, 8, 9, XB, WS_Y)
    srd(20, 8, 9, PB, WS_P)
    if mode == 'A':
        srd(24, 8, 9, XB, WS_X1)
    elif mode == 'B':
        srd(24, 8, 9, XB, WS_X3)
    else:
        srd(24, 6, 7, XB)
    srd(28, 8, 9, XB, WS_XN)
    X, Yr, L, L2, PT = 10, 46, 82, 100, 120
    def pload(z, base):
        for i in range(9):
            if i % 4 == 0:
                I(f"s_mov_b32 s44, {z*S*D*4 + i*1024:#x}")
            I(f"buffer_load_dwordx4 v[{base+4*i}:{base+4*i+3}], v4, s[20:23], s44 offen offset:{(i%4)*1024}")
    if mode != 'A':
        for z in range(3):
            pload(z, PT + 36*z)
    for i in range(9):
        I(f"buffer_load_dwordx2 v[{L+2*i}:{L+2*i+1}], v3, s[12:15], 0 offen offset:{i*32}")
    if mode != 'C':
        for i in range(9):
            I(f"buffer_load_dwordx2 v[{L2+2*i}:{L2+2*i+1}], v3, s[16:19], 0 offen offset:{i*32}")
    I("s_waitcnt vmcnt(0)")
    for i in range(9):
        I(f"v_lshlrev_b32 v{X+4*i}, 16, v{L+2*i}")
        I(f"v_and_b32 v{X+4*i+1}, s40, v{L+2*i}")
        I(f"v_lshlrev_b32 v{X+4*i+2}, 16, v{L+2*i+1}")
        I(f"v_and_b32 v{X+4*i+3}, s40, v{L+2*i+1}")
    if mode != 'C':
        for i in range(9):
            I(f"v_lshlrev_b32 v{Yr+4*i}, 16, v{L2+2*i}")
            I(f"v_and_b32 v{Yr+4*i+1}, s40, v{L2+2*i}")
            I(f"v_lshlrev_b32 v{Yr+4*i+2}, 16, v{L2+2*i+1}")
            I(f"v_and_b32 v{Yr+4*i+3}, s40, v{L2+2*i+1}")
    if mode != 'A':
        for i in range(36):
            I(f"v_add_f32 v{PT+i}, v{PT+i}, v{PT+36+i}")
        pload(3, PT + 36)
        for i in range(36):
            I(f"v_add_f32 v{PT+i}, v{PT+i}, v{PT+72+i}")
        I("s_waitcnt vmcnt(0)")
        for i in range(36):
            I(f"v_add_f32 v{PT+i}, v{PT+i}, v{PT+36+i}")
        for i in range(0, 36, 2):
            rnd2(PT+i, PT+i+1, 5, 40)
        for i in range(36):
            I(f"v_add_f32 v{X+i}, v{X+i}, v{PT+i}")
        for i in range(0, 36, 2):
            if mode == 'C':
                I(f"v_cvt_pk_bf16_f32 v{L+i//2}, v{X+i}, v{X+i+1}")
            else:
                rnd2(X+i, X+i+1, 5, 40)
    if mode == 'C':
        for i in range(9):
            I(f"buffer_store_dwordx2 v[{L+2*i}:{L+2*i+1}], v3, s[24:27], 0 offen offset:{i*32}")
        I("s_waitcnt vmcnt(0)")
        kernel_end(name)
        return
    cnt = [0]
    def rowsum(r):
        off = 1024 * cnt[0]; cnt[0] += 1
        I(f"ds_write_b32 v9, v{r} offset:{off}")
        I("s_waitcnt lgkmcnt(0)")
        I("s_barrier")
        for q in range(4):
            I(f"ds_read_b128 v[{160+4*q}:{163+4*q}], v1 offset:{off+16*q}")
        I("s_waitcnt lgkmcnt(0)")
        I(f"v_add_f32 v{r}, v160, v161")
        for q in range(2, 16):
            I(f"v_add_f32 v{r}, v{r}, v{160+q}")
    def layernorm(src, dst):
        I(f"v_add_f32 v5, v{src}, v{src+1}")
        for i in range(2, 36):
            I(f"v_add_f32 v5, v5, v{src+i}")
        rowsum(5)
        I("v_mul_f32 v5, 0x3ae38e39, v5")
        I("v_mov_b32 v6, 0")
        for i in range(36):
            I(f"v_sub_f32 v7, v{src+i}, v5")
            I("v_fmac_f32 v6, v7, v7")
        rowsum(6)
        I("v_mul_f32 v6, 0x3ae38e39, v6")
        rnd2(5, 6, 7, 40)
        I("v_add_f32 v6, 0x3727c5ac, v6")
        I("v_cvt_pk_bf16_f32 v7, v6, v6")
        I("v_lshlrev_b32 v6, 16, v7")
        I("v_sqrt_f32 v6, v6")
        nop(0)
        I("v_cvt_pk_bf16_f32 v7, v6, v6")
        I("v_lshlrev_b32 v6, 16, v7")
        I("v_rcp_f32 v6, v6")
        for i in range(36):
            I(f"v_sub_f32 v{dst+i}, v{src+i}, v5")
        for i in range(0, 36, 2):
            rnd2(dst+i, dst+i+1, 7, 40)
        for i in range(36):
            I(f"v_mul_f32 v{dst+i}, v{dst+i}, v6")
        for i in range(0, 36, 2):
            rnd2(dst+i, dst+i+1, 7, 40)
    N = 120
    layernorm(X, N)
    for i in range(36):
        I(f"v_mul_f32 v{N+i}, v{N+i}, v{Yr+i}")
    for i in range(0, 36, 2):
        rnd2(N+i, N+i+1, 7, 40)
    for i in range(36):
        I(f"v_add_f32 v{X+i}, v{X+i}, v{N+i}")
    for i in range(0, 36, 2):
        I(f"v_cvt_pk_bf16_f32 v{L+i//2}, v{X+i}, v{X+i+1}")
        I(f"v_lshlrev_b32 v{X+i}, 16, v{L+i//2}")
        I(f"v_and_b32 v{X+i+1}, s40, v{L+i//2}")
    for i in range(9):
        I(f"buffer_store_dwordx2 v[{L+2*i}:{L+2*i+1}], v3, s[24:27], 0 offen offset:{i*32}")
    layernorm(X, N)
    for i in range(0, 36, 2):
        I(f"v_cvt_pk_bf16_f32 v{L2+i//2}, v{N+i}, v{N+i+1}")
    for i in range(9):
        if i == 8:
            I("s_movk_i32 s44, 4096")
        I(f"buffer_store_dwordx2 v[{L2+2*i}:{L2+2*i+1}], v8, s[28:31], {'s44' if i == 8 else '0'} offen offset:{(i%8)*512}")
    I("s_waitcnt vmcnt(0)")
    kernel_end(name)

def gemm_kernel(name, which):
    g1 = which == 1
    kernel_begin(name, 256)
    I("s_load_dwordx2 s[8:9], s[0:1], 96")
    I("s_and_b32 s3, s2, 7")
    I("s_lshr_b32 s44, s2, 3")
    if g1:
        I("s_and_b32 s45, s44, 7")
        I("s_lshr_b32 s44, s44, 3")
        I("s_lshl_b32 s3, s3, 2")
        I("s_add_u32 s46, s3, s44")
    else:
        I("s_and_b32 s46, s44, 3")
        I("s_bfe_u32 s49, s44, 0x20002")
        I("s_lshr_b32 s44, s44, 4")
        I("s_lshl_b32 s3, s3, 1")
        I("s_add_u32 s45, s3, s44")
    I("v_lshrrev_b32 v1, 6, v0")
    I("v_and_b32 v2, 63, v0")
    I("v_readfirstlane_b32 s42, v1")
    I("v_lshlrev_b32 v10, 4, v2")
    I("v_and_b32 v3, 15, v2")
    I("v_lshrrev_b32 v4, 4, v2")
    I("s_waitcnt lgkmcnt(0)")
    if g1:
        srd(12, 8, 9, W13B, WS_W13)
        srd(20, 8, 9, XB, WS_XN)
        srd(24, 8, 9, HB, WS_H)
        I("s_mul_i32 s50, s46, 331776")
        I("s_lshl_b32 s48, s45, 4")
        I("s_lshl_b32 s3, s42, 1")
        I("s_add_u32 s48, s48, s3")
        I("s_mul_i32 s58, s48, 18432")
        I("v_lshlrev_b32 v12, 4, v3")
        I("v_lshrrev_b32 v5, 1, v4")
        I("v_lshl_add_u32 v12, v5, 8, v12")
        I("v_and_b32 v5, 1, v4")
        I("v_lshl_add_u32 v12, v5, 3, v12")
        I("s_mul_i32 s3, s48, 147456")
        I("s_mul_i32 s47, s46, 4608")
        I("s_add_u32 s3, s3, s47")
        I("v_add_u32 v12, s3, v12")
        I("v_add_u32 v13, 147456, v12")
        I("v_mov_b32 v14, v10")
        NMB = 2
    else:
        srd(12, 8, 9, W2B, WS_W2)
        srd(20, 8, 9, HB, WS_H)
        srd(24, 8, 9, PB, WS_P)
        I("s_lshl_b32 s50, s46, 2")
        I("s_add_u32 s50, s50, s49")
        I("s_mul_i32 s50, s50, 331776")
        I("s_lshr_b32 s43, s42, 1")
        I("s_lshl_b32 s48, s45, 3")
        I("s_and_b32 s3, s42, 1")
        I("s_lshl_b32 s3, s3, 2")
        I("s_add_u32 s48, s48, s3")
        I("s_mul_i32 s58, s48, 144")
        I("s_mul_i32 s3, s49, 36")
        I("s_add_u32 s58, s58, s3")
        I("s_mul_i32 s3, s43, 9")
        I("s_add_u32 s58, s58, s3")
        I("s_lshl_b32 s58, s58, 10")
        I("s_mul_i32 s59, s48, 36")
        I("s_mul_i32 s3, s46, 9")
        I("s_add_u32 s59, s59, s3")
        I("s_lshl_b32 s59, s59, 10")
        I(f"s_mul_i32 s3, s49, {S*D*4}")
        I("s_add_u32 s59, s59, s3")
        I("s_mul_i32 s3, s43, 9216")
        I("v_add_u32 v14, s3, v10")
        NMB = 4
    I("s_lshl_b32 s53, s42, 12")
    I("s_and_b32 s54, s42, 3")
    I("s_lshl_b32 s54, s54, 10")
    I("s_add_u32 s54, s54, 32768")
    ACC, AR, BR = 112, 64, 40
    for i in range(144):
        I(f"v_mov_b32 v{ACC+i}, 0")
    vq = VmQueue()
    if g1:
        stages = [(p_, st) for p_ in range(2) for st in range(9)]
        SL = 20480
    else:
        stages = [(0, st) for st in range(9)]
        SL = STG
    NG = len(stages)
    def nfr(gi):
        return (20, 16)[stages[gi][0]] if g1 else 9
    def issueA(gi):
        st = stages[gi][1]
        b = AR + 16 * (gi % 3)
        ops = []
        if g1:
            for mb in range(2):
                ops.append((f"s_add_u32 s55, s58, {mb*18432 + st*2048}", None))
                for ks in range(2):
                    r = b + 8*ks + 4*mb
                    ops.append((f"buffer_load_dwordx4 v[{r}:{r+3}], v10, s[20:23], s55 offen offset:{1024*ks}", ('A', gi)))
        else:
            for mb in range(4):
                ops.append((f"s_add_u32 s55, s58, {mb*147456 + st*1024}", None))
                r = b + 4*mb
                ops.append((f"buffer_load_dwordx4 v[{r}:{r+3}], v10, s[20:23], s55 offen", ('A', gi)))
        return ops
    def issueD(gi):
        p_, st = stages[gi]
        slot = (gi % NSLOT) * SL
        ops = []
        if g1:
            src = st*20480 if p_ == 0 else 184320 + st*16384
            ops.append((f"s_add_u32 m0, s53, {slot}", None))
            ops.append((f"s_add_u32 s56, s50, {src}", None))
            ops.append((f"s_add_u32 s57, s56, s53", None))
            ops.append((f"buffer_load_dwordx4 v10, s[12:15], s57 offen lds", ('D', gi)))
            ops.append((f"s_add_u32 m0, s53, {slot + 8192}", None))
            ops.append((f"s_add_u32 s57, s57, 8192", None))
            ops.append((f"buffer_load_dwordx4 v10, s[12:15], s57 offen lds", ('D', gi)))
            if p_ == 0:
                ops.append((f"s_add_u32 m0, s54, {slot}", None))
                ops.append((f"s_add_u32 s57, s56, s54", None))
                ops.append((f"buffer_load_dwordx4 v10, s[12:15], s57 offen lds", ('D', gi)))
            return ops
        ops.append((f"s_add_u32 m0, s53, {slot}", None))
        ops.append((f"s_add_u32 s56, s50, {st*STG}", None))
        ops.append((f"s_add_u32 s57, s56, s53", None))
        for c in range(4):
            ops.append((f"buffer_load_dwordx4 v10, s[12:15], s57 offen offset:{1024*c} lds", ('D', gi)))
        ops.append((f"s_add_u32 m0, s54, {slot}", None))
        ops.append((f"s_add_u32 s57, s56, s54", None))
        ops.append((f"buffer_load_dwordx4 v10, s[12:15], s57 offen lds", ('D', gi)))
        return ops
    def emit_ops(ops):
        for o, tag in ops:
            I(o)
            if tag:
                vq.push(tag)
    def epi(mb, t):
        g = ACC + ((0*9 + t)*2 + mb)*4
        u = ACC + ((1*9 + t)*2 + mb)*4
        T = 24
        ops = []
        for i in range(4):
            ops.append((f"v_mul_f32 v{T+i}, s60, v{g+i}", None))
        for i in range(4):
            ops.append((f"v_exp_f32 v{T+i}, v{T+i}", None))
        for i in range(4):
            ops.append((f"v_mul_f32 v{g+i}, v{g+i}, v{u+i}", None))
        for i in range(4):
            ops.append((f"v_add_f32 v{T+i}, 1.0, v{T+i}", None))
        for i in range(4):
            ops.append((f"v_rcp_f32 v{T+i}, v{T+i}", None))
        ops.append(("s_nop 0", None))
        for i in range(4):
            ops.append((f"v_mul_f32 v{g+i}, v{g+i}, v{T+i}", None))
        ops.append((f"v_cvt_pk_bf16_f32 v{u}, v{g}, v{g+1}", None))
        ops.append((f"v_cvt_pk_bf16_f32 v{u+1}, v{g+2}, v{g+3}", None))
        if t < 8:
            ops.append((f"buffer_store_dwordx2 v[{u}:{u+1}], v{12+mb}, s[24:27], 0 offen offset:{512*t}", ('S', 0)))
        else:
            ops.append((f"buffer_store_dwordx2 v[{u}:{u+1}], v{12+mb}, s[24:27], s61 offen", ('S', 0)))
        return ops
    if g1:
        I("s_mov_b32 s60, 0xbfb8aa3b")
        I("s_movk_i32 s61, 4096")
        I("s_lshl_b32 s53, s42, 10")
        I("s_and_b32 s54, s42, 3")
        I("s_lshl_b32 s54, s54, 10")
        I("s_add_u32 s54, s54, 16384")
    emit_ops(issueA(0)); emit_ops(issueD(0)); emit_ops(issueA(1)); emit_ops(issueD(1)); emit_ops(issueD(2))
    RING, LA = 6, 4
    epiq = []
    for gi in range(NG):
        p_, st = stages[gi]
        NF = nfr(gi)
        slot = (gi % NSLOT) * SL
        vq.wait_for({('A', gi), ('D', gi)})
        I("s_barrier")
        I(f"v_add_u32 v20, {slot}, v14")
        side = []
        if gi + 2 < NG:
            side += issueA(gi + 2)
        if gi + 3 < NG:
            side += issueD(gi + 3)
        if g1 and gi == 10:
            for mb in range(2):
                for t in range(5):
                    epiq += epi(mb, t)
        def rd(fi):
            b = BR + 4 * (fi % RING)
            I(f"ds_read_b128 v[{b}:{b+3}], v20 offset:{fi*1024}")
        for fi in range(LA):
            rd(fi)
        for fi in range(NF):
            if fi + LA < NF:
                rd(fi + LA)
            I(f"s_waitcnt lgkmcnt({min(LA, NF - 1 - fi)})")
            b = BR + 4 * (fi % RING)
            for mb in range(NMB):
                if g1:
                    ntp = (5, 4)[p_]
                    ks, t, mat = fi // (2*ntp), (fi % (2*ntp)) // 2 + 5*p_, fi % 2
                    acc = ACC + ((mat*9 + t)*2 + mb) * 4
                    ar = AR + 16*(gi % 3) + 8*ks + 4*mb
                else:
                    acc = ACC + (fi*4 + mb) * 4
                    ar = AR + 16*(gi % 3) + 4*mb
                I(f"v_mfma_f32_16x16x32_bf16 v[{acc}:{acc+3}], v[{b}:{b+3}], v[{ar}:{ar+3}], v[{acc}:{acc+3}]")
                if side and (fi or mb):
                    chunk, side = side[:1], side[1:]
                    emit_ops(chunk)
                elif epiq:
                    chunk, epiq = epiq[:2], epiq[2:]
                    emit_ops(chunk)
        emit_ops(side)
    emit_ops(epiq)
    nop(15)
    if g1:
        for mb in range(2):
            for t in range(5, 9):
                emit_ops(epi(mb, t))
        I("s_waitcnt vmcnt(0)")
        kernel_end(name)
        return
    I("s_barrier")
    I("v_lshlrev_b32 v5, 4, v2")
    I("s_mul_i32 s3, s42, 18432")
    I("v_add_u32 v5, s3, v5")
    I("s_xor_b32 s3, s42, 4")
    I("s_mul_i32 s3, s3, 18432")
    I("v_lshlrev_b32 v6, 4, v2")
    I("v_add_u32 v6, s3, v6")
    I("s_xor_b32 s3, s42, 2")
    I("s_mul_i32 s3, s3, 18432")
    I("v_lshlrev_b32 v7, 4, v2")
    I("v_add_u32 v7, s3, v7")
    for hi in range(2):
        lab = f"{name}_h{hi}"
        if hi == 0:
            I("s_cmp_ge_u32 s42, 4")
            I(f"s_cbranch_scc1 {name}_h1")
        else:
            e(f"{lab}:")
        keep = list(range(18*hi, 18*hi + 18))
        give = list(range(18*(1-hi), 18*(1-hi) + 18))
        for i, fr in enumerate(give):
            I(f"ds_write_b128 v5, v[{ACC+4*fr}:{ACC+4*fr+3}] offset:{1024*i}")
        I("s_waitcnt lgkmcnt(0)")
        I("s_barrier")
        for i0 in range(0, 18, 6):
            for i in range(i0, i0 + 6):
                I(f"ds_read_b128 v[{40+4*(i-i0)}:{43+4*(i-i0)}], v6 offset:{1024*i}")
            I("s_waitcnt lgkmcnt(0)")
            for i in range(i0, i0 + 6):
                for c in range(4):
                    I(f"v_add_f32 v{ACC+4*keep[i]+c}, v{ACC+4*keep[i]+c}, v{40+4*(i-i0)+c}")
        I("s_barrier")
        for lo in range(2):
            lab2 = f"{name}_h{hi}l{lo}"
            if lo == 0:
                I("s_bitcmp1_b32 s42, 1")
                I(f"s_cbranch_scc1 {name}_h{hi}l1")
            else:
                e(f"{lab2}:")
            k9 = keep[9*lo:9*lo+9]
            g9 = keep[9*(1-lo):9*(1-lo)+9]
            for i, fr in enumerate(g9):
                I(f"ds_write_b128 v5, v[{ACC+4*fr}:{ACC+4*fr+3}] offset:{1024*i}")
            I("s_waitcnt lgkmcnt(0)")
            I("s_barrier")
            for i in range(9):
                I(f"ds_read_b128 v[{40+4*(i%6)}:{43+4*(i%6)}], v7 offset:{1024*i}")
                if i in (5, 8):
                    I("s_waitcnt lgkmcnt(0)")
                    for i2 in range(0 if i == 5 else 6, i + 1):
                        fr = k9[i2]
                        for c in range(4):
                            I(f"v_add_f32 v{ACC+4*fr+c}, v{ACC+4*fr+c}, v{40+4*(i2%6)+c}")
            for fr in k9:
                t, mb = fr // 4, fr % 4
                I(f"s_add_u32 s61, s59, {mb*36864 + t*1024}")
                I(f"buffer_store_dwordx4 v[{ACC+4*fr}:{ACC+4*fr+3}], v10, s[24:27], s61 offen")
            I("s_waitcnt vmcnt(0)")
            I("s_endpgm")
    kernel_end(name)

def main(path):
    hdr = open("interleave_layers__ssm_conv_h3__glu_gated_swiglu__prompt.s.ref").read().split("\n")
    for l in hdr:
        if l.startswith(";") and "@launch" not in l:
            e(l)
    L = [("conv_kernel", 144+864, 256, G.CONV_LDS), ("rowa_kernel", 128, 256, 4096),
         ("gemm1_kernel", 256, 512, GEMM_LDS), ("gemm2_kernel", 256, 512, GEMM_LDS),
         ("rowb_kernel", 128, 256, 4096),
         ("gemm1_kernel", 256, 512, GEMM_LDS), ("gemm2_kernel", 256, 512, GEMM_LDS),
         ("rowc_kernel", 128, 256, 4096)]
    for k, g, b, l in L:
        e(f"; @launch kernel={k} grid=({g},1,1) block=({b},1,1) lds={l}")
    e('.amdgcn_target "amdgcn-amd-amdhsa--gfx950"')
    e(".text")
    G.conv_kernel("conv_kernel")
    i = out.index("    s_cbranch_scc1 conv_kernel_done")
    out[i-1] = "    s_cmp_ge_u32 s2, 1008"
    out.insert(i+1, "    s_cmp_ge_u32 s2, 144")
    out.insert(i+2, "    s_cbranch_scc1 prep_path")
    prep_kernel("prep_path")
    row_kernel("rowa_kernel", 'A')
    row_kernel("rowb_kernel", 'B')
    row_kernel("rowc_kernel", 'C')
    gemm_kernel("gemm1_kernel", 1)
    gemm_kernel("gemm2_kernel", 2)
    e('.section .rodata,"a"')
    for k, v in (("conv_kernel", 168), ("rowa_kernel", 232), ("rowb_kernel", 232), ("rowc_kernel", 232),
                 ("gemm1_kernel", 256), ("gemm2_kernel", 256)):
        e(".p2align 6")
        descriptor(k, v)
    open(path, "w").write("\n".join(out) + "\n")

if __name__ == "__main__":
    main(sys.argv[1] if len(sys.argv) > 1 else "interleave_layers__ssm_conv_h3__glu_gated_swiglu__prompt.s")
```

```python
import sys, os
sys.path.insert(0, "dev")
import gen as G
from gen import e, I, nop, srd, rnd2, kernel_begin, kernel_end, descriptor, VmQueue, out
from gen import S, D, F, XB, HB, PB, WB, WS_Y, WS_X1, WS_XN, WS_X3, WS_H, WS_P
WS_W13 = 0x5000000
WS_W2  = 0x6000000
W13B = 32*9*36*1024
W2B = 4*4*9*36*1024
STG = 36864
NSLOT = 4
GEMM_LDS = NSLOT * STG

def prep_kernel(name):
    e(f"{name}:")
    G.CUR[0] = name
    I("s_load_dwordx4 s[4:7], s[0:1], 56")
    I("s_load_dwordx2 s[10:11], s[0:1], 72")
    I("s_load_dwordx2 s[8:9], s[0:1], 96")
    I("v_lshrrev_b32 v1, 6, v0")
    I("v_and_b32 v2, 63, v0")
    I("v_readfirstlane_b32 s42, v1")
    I("v_and_b32 v3, 15, v2")
    I("v_lshrrev_b32 v4, 4, v2")
    I("v_lshlrev_b32 v5, 3, v3")
    I("v_lshl_add_u32 v5, v4, 10, v5")
    I("s_mul_i32 s53, s42, 5120")
    I("s_sub_u32 s2, s2, 144")
    I("s_lshl_b32 s2, s2, 2")
    I("s_add_u32 s2, s2, s42")
    I("s_and_b32 s42, s2, 7")
    I("s_lshr_b32 s2, s2, 3")
    I("v_add_u32 v5, s53, v5")
    I("v_and_b32 v6, 1, v4")
    I("v_lshl_add_u32 v14, v6, 7, v5")
    I("v_xor_b32 v6, 1, v6")
    I("v_lshl_add_u32 v15, v6, 7, v5")
    I("v_lshlrev_b32 v16, 3, v2")
    I("v_add_u32 v16, s53, v16")
    I("v_lshlrev_b32 v19, 4, v2")
    I("s_waitcnt lgkmcnt(0)")
    I("s_cmp_ge_u32 s2, 288")
    I(f"s_cbranch_scc1 {name}_w2")
    for which in (13, 2):
        if which == 2:
            e(f"{name}_w2:")
        pitch = 9216 if which == 13 else 1152
        I(f"s_movk_i32 s60, {pitch}")
        I("v_lshrrev_b32 v5, 5, v2")
        I("v_lshlrev_b32 v5, 2, v5")
        I("v_bfe_u32 v6, v2, 1, 2")
        I("v_add_u32 v5, v5, v6")
        I("v_mul_lo_u32 v5, v5, s60")
        I("v_bfe_u32 v6, v2, 4, 1")
        I("v_lshl_add_u32 v5, v6, 6, v5")
        I("v_and_b32 v6, 1, v2")
        I("v_lshl_add_u32 v5, v6, 4, v5")
        I("v_bfe_u32 v6, v2, 3, 1")
        I("v_lshl_add_u32 v17, v6, 5, v5")
        I("v_xor_b32 v6, 1, v6")
        I("v_lshl_add_u32 v18, v6, 5, v5")
        I("v_lshrrev_b32 v5, 5, v2")
        I("v_lshlrev_b32 v5, 2, v5")
        I("v_bfe_u32 v6, v2, 3, 2")
        I("v_lshl_add_u32 v5, v6, 3, v5")
        I("v_bfe_u32 v6, v2, 1, 2")
        I("v_add_u32 v5, v5, v6")
        I("v_mul_lo_u32 v5, v5, s60")
        I("v_and_b32 v6, 1, v2")
        I("v_lshl_add_u32 v20, v6, 4, v5")
        if which == 13:
            I("s_mul_hi_u32 s44, s2, 0x1c71c71d")
            I("s_mul_i32 s3, s44, 9")
            I("s_sub_u32 s45, s2, s3")
            I("s_lshr_b32 s46, s42, 2")
            I("s_bfe_u32 s47, s42, 0x10001")
            I("s_and_b32 s48, s42, 1")
            I("s_cmp_eq_u32 s47, 0")
            I("s_cselect_b32 s12, s4, s6")
            I("s_cselect_b32 s13, s5, s7")
            I(f"s_mov_b32 s14, {WB:#x}")
            I("s_mov_b32 s15, 0x00020000")
            srd(16, 8, 9, W13B, WS_W13)
            I("s_lshl_b32 s50, s45, 6")
            I("s_lshl_b32 s3, s46, 5")
            I("s_add_u32 s50, s50, s3")
            I("s_mul_i32 s50, s50, 9216")
            I("s_mul_i32 s3, s44, 288")
            I("s_add_u32 s50, s50, s3")
            I("s_lshl_b32 s3, s48, 7")
            I("s_add_u32 s51, s50, s3")
            I("s_add_u32 s52, s50, 256")
            I("s_mul_i32 s54, s44, 331776")
            I("s_lshl_b32 s3, s47, 10")
            I("s_add_u32 s54, s54, s3")
            I("s_mul_i32 s62, s45, 20480")
            I("s_add_u32 s62, s62, s54")
            I("s_mul_i32 s3, s46, 10240")
            I("s_add_u32 s62, s62, s3")
            I("s_lshl_b32 s63, s45, 14")
            I("s_add_u32 s63, s63, s54")
            I("s_lshl_b32 s3, s46, 13")
            I("s_add_u32 s63, s63, s3")
            I("s_add_u32 s63, s63, 184320")
            I("s_add_u32 s56, s63, 6144")
            for tt in range(4):
                I(f"s_add_u32 s3, s62, {tt*2048}")
                I(f"s_add_u32 s{64+tt}, s{62 if tt == 0 else 63}, {8192 if tt == 0 else (tt-1)*2048}")
                I("s_cmp_eq_u32 s48, 0")
                I(f"s_cselect_b32 s{64+tt}, s3, s{64+tt}")
            tstride = None
        else:
            I("s_sub_u32 s43, s2, 288")
            I("s_mul_hi_u32 s44, s43, 0x1c71c71d")
            I("s_mul_i32 s3, s44, 9")
            I("s_sub_u32 s45, s43, s3")
            I("s_and_b32 s46, s44, 3")
            I("s_lshr_b32 s44, s44, 2")
            I("s_lshr_b32 s47, s42, 1")
            I("s_and_b32 s48, s42, 1")
            srd(12, 10, 11, WB)
            srd(16, 8, 9, W2B, WS_W2)
            I("s_mul_i32 s50, s46, 1152")
            I("s_mul_i32 s3, s47, 288")
            I("s_add_u32 s50, s50, s3")
            I("s_lshl_b32 s3, s45, 5")
            I("s_add_u32 s50, s50, s3")
            I("s_mul_i32 s50, s50, 1152")
            I("s_mul_i32 s3, s44, 288")
            I("s_add_u32 s50, s50, s3")
            I("s_lshl_b32 s3, s48, 7")
            I("s_add_u32 s51, s50, s3")
            I("s_add_u32 s52, s50, 256")
            I("s_mul_i32 s54, s43, 36")
            I("s_mul_i32 s3, s47, 9")
            I("s_add_u32 s54, s54, s3")
            I("s_lshl_b32 s55, s54, 10")
            I("s_add_u32 s56, s55, 8192")
            I("s_lshl_b32 s3, s48, 12")
            I("s_add_u32 s55, s55, s3")
            tstride = 1024
        for sg in range(4):
            I(f"s_add_u32 m0, s53, {sg*1024}")
            I(f"s_add_u32 s57, s51, {sg*8*pitch}")
            I(f"buffer_load_dwordx4 v{17 + (sg & 1)}, s[12:15], s57 offen lds")
        I("s_add_u32 m0, s53, 4096")
        nop(0)
        I("buffer_load_dwordx4 v20, s[12:15], s52 offen lds")
        I("s_waitcnt vmcnt(0)")
        for tt in range(4):
            for j in range(2):
                I(f"ds_read_b64_tr_b16 v[{24+4*tt+2*j}:{25+4*tt+2*j}], v{14+(tt&1)} offset:{256*(2*j+(tt>>1))}")
        for j in range(2):
            I(f"ds_read_b64_tr_b16 v[{40+2*j}:{41+2*j}], v16 offset:{4096+512*j}")
        I("s_waitcnt lgkmcnt(0)")
        for tt in range(4):
            if tstride is None:
                I(f"buffer_store_dwordx4 v[{24+4*tt}:{27+4*tt}], v19, s[16:19], s{64+tt} offen")
            else:
                I(f"buffer_store_dwordx4 v[{24+4*tt}:{27+4*tt}], v19, s[16:19], s55 offen offset:{tt*tstride}")
        I("buffer_store_dwordx4 v[40:43], v19, s[16:19], s56 offen")
        I("s_waitcnt vmcnt(0)")
        I("s_endpgm")

def rowa_old(name):
    kernel_begin(name, 512)
    I("s_load_dwordx2 s[4:5], s[0:1], 0")
    I("s_load_dwordx2 s[8:9], s[0:1], 96")
    I("s_mov_b32 s40, 0xffff0000")
    I("v_lshrrev_b32 v1, 4, v0")
    I("s_lshl_b32 s3, s2, 2")
    I("v_add_u32 v1, s3, v1")
    I("v_and_b32 v2, 15, v0")
    I("s_movk_i32 s41, 1152")
    I("v_mul_lo_u32 v3, v1, s41")
    I("v_lshl_add_u32 v3, v2, 3, v3")
    I("v_lshrrev_b32 v5, 4, v1")
    I("v_and_b32 v6, 15, v1")
    I("s_movk_i32 s41, 18432")
    I("v_mul_lo_u32 v8, v5, s41")
    I("v_lshl_add_u32 v8, v6, 4, v8")
    I("v_lshrrev_b32 v7, 3, v2")
    I("v_lshl_add_u32 v8, v7, 10, v8")
    I("v_bfe_u32 v7, v2, 1, 2")
    I("v_lshl_add_u32 v8, v7, 8, v8")
    I("v_and_b32 v7, 1, v2")
    I("v_lshl_add_u32 v8, v7, 3, v8")
    I("s_waitcnt lgkmcnt(0)")
    srd(12, 4, 5, XB)
    srd(16, 8, 9, XB, WS_Y)
    srd(24, 8, 9, XB, WS_X1)
    srd(28, 8, 9, XB, WS_XN)
    X, Yr, L, L2 = 10, 46, 82, 100
    for i in range(9):
        I(f"buffer_load_dwordx2 v[{L+2*i}:{L+2*i+1}], v3, s[12:15], 0 offen offset:{i*128}")
    for i in range(9):
        I(f"buffer_load_dwordx2 v[{L2+2*i}:{L2+2*i+1}], v3, s[16:19], 0 offen offset:{i*128}")
    I("s_waitcnt vmcnt(0)")
    for (Dd, Ss) in ((X, L), (Yr, L2)):
        for i in range(9):
            I(f"v_lshlrev_b32 v{Dd+4*i}, 16, v{Ss+2*i}")
            I(f"v_and_b32 v{Dd+4*i+1}, s40, v{Ss+2*i}")
            I(f"v_lshlrev_b32 v{Dd+4*i+2}, 16, v{Ss+2*i+1}")
            I(f"v_and_b32 v{Dd+4*i+3}, s40, v{Ss+2*i+1}")
    def rowsum(r):
        for sh in (8, 4, 2, 1):
            nop(1)
            I(f"v_add_f32_dpp v{r}, v{r}, v{r} row_ror:{sh} row_mask:0xf bank_mask:0xf")
    def layernorm(src, dst):
        I(f"v_add_f32 v5, v{src}, v{src+1}")
        for i in range(2, 36):
            I(f"v_add_f32 v5, v5, v{src+i}")
        rowsum(5)
        I("v_mul_f32 v5, 0x3ae38e39, v5")
        I("v_mov_b32 v6, 0")
        for i in range(36):
            I(f"v_sub_f32 v7, v{src+i}, v5")
            I("v_fmac_f32 v6, v7, v7")
        rowsum(6)
        I("v_mul_f32 v6, 0x3ae38e39, v6")
        rnd2(5, 6, 7, 40)
        I("v_add_f32 v6, 0x3727c5ac, v6")
        I("v_cvt_pk_bf16_f32 v7, v6, v6")
        I("v_lshlrev_b32 v6, 16, v7")
        I("v_sqrt_f32 v6, v6")
        nop(0)
        I("v_cvt_pk_bf16_f32 v7, v6, v6")
        I("v_lshlrev_b32 v6, 16, v7")
        I("v_rcp_f32 v6, v6")
        for i in range(36):
            I(f"v_sub_f32 v{dst+i}, v{src+i}, v5")
        for i in range(0, 36, 2):
            rnd2(dst+i, dst+i+1, 7, 40)
        for i in range(36):
            I(f"v_mul_f32 v{dst+i}, v{dst+i}, v6")
        for i in range(0, 36, 2):
            rnd2(dst+i, dst+i+1, 7, 40)
    N = 120
    layernorm(X, N)
    for i in range(36):
        I(f"v_mul_f32 v{N+i}, v{N+i}, v{Yr+i}")
    for i in range(0, 36, 2):
        rnd2(N+i, N+i+1, 7, 40)
    for i in range(36):
        I(f"v_add_f32 v{X+i}, v{X+i}, v{N+i}")
    for i in range(0, 36, 2):
        I(f"v_cvt_pk_bf16_f32 v{L+i//2}, v{X+i}, v{X+i+1}")
        I(f"v_lshlrev_b32 v{X+i}, 16, v{L+i//2}")
        I(f"v_and_b32 v{X+i+1}, s40, v{L+i//2}")
    for i in range(9):
        I(f"buffer_store_dwordx2 v[{L+2*i}:{L+2*i+1}], v3, s[24:27], 0 offen offset:{i*128}")
    layernorm(X, N)
    for i in range(0, 36, 2):
        I(f"v_cvt_pk_bf16_f32 v{L2+i//2}, v{N+i}, v{N+i+1}")
    for i in range(9):
        if i % 2 == 0:
            I(f"s_movk_i32 s42, {i*2048}")
        I(f"buffer_store_dwordx2 v[{L2+2*i}:{L2+2*i+1}], v8, s[28:31], s42 offen offset:{(i%2)*2048}")
    I("s_waitcnt vmcnt(0)")
    kernel_end(name)

def row_kernel(name, mode):
    kernel_begin(name, 128)
    I("s_load_dwordx2 s[4:5], s[0:1], 0")
    I("s_load_dwordx2 s[6:7], s[0:1], 80")
    I("s_load_dwordx2 s[8:9], s[0:1], 96")
    I("s_mov_b32 s40, 0xffff0000")
    I("v_lshrrev_b32 v1, 6, v0")
    I("v_and_b32 v2, 63, v0")
    I("v_readfirstlane_b32 s42, v1")
    I("v_and_b32 v5, 15, v2")
    I("v_lshrrev_b32 v6, 4, v2")
    I("s_lshl_b32 s3, s2, 4")
    I("v_add_u32 v3, s3, v5")
    I("s_movk_i32 s41, 1152")
    I("v_mul_lo_u32 v3, v3, s41")
    I("v_lshl_add_u32 v3, v6, 3, v3")
    I("s_mul_i32 s3, s42, 288")
    I("v_add_u32 v3, s3, v3")
    I("s_mul_i32 s3, s2, 36")
    I("s_mul_i32 s43, s42, 9")
    I("s_add_u32 s3, s3, s43")
    I("s_lshl_b32 s3, s3, 10")
    I("v_lshlrev_b32 v4, 4, v2")
    I("v_add_u32 v4, s3, v4")
    I("v_lshlrev_b32 v8, 4, v5")
    I("v_lshrrev_b32 v7, 1, v6")
    I("v_lshl_add_u32 v8, v7, 8, v8")
    I("v_and_b32 v7, 1, v6")
    I("v_lshl_add_u32 v8, v7, 3, v8")
    I("s_mul_i32 s3, s2, 18432")
    I("s_lshl_b32 s43, s43, 9")
    I("s_add_u32 s3, s3, s43")
    I("v_add_u32 v8, s3, v8")
    I("v_lshlrev_b32 v9, 4, v5")
    I("v_add_u32 v9, v9, v6")
    I("s_lshl_b32 s3, s42, 2")
    I("v_add_u32 v9, s3, v9")
    I("v_lshlrev_b32 v9, 2, v9")
    I("v_lshlrev_b32 v1, 6, v5")
    I("s_waitcnt lgkmcnt(0)")
    if mode == 'A':
        srd(12, 4, 5, XB)
    elif mode == 'B':
        srd(12, 8, 9, XB, WS_X1)
    else:
        srd(12, 8, 9, XB, WS_X3)
    srd(16, 8, 9, XB, WS_Y)
    srd(20, 8, 9, PB, WS_P)
    if mode == 'A':
        srd(24, 8, 9, XB, WS_X1)
    elif mode == 'B':
        srd(24, 8, 9, XB, WS_X3)
    else:
        srd(24, 6, 7, XB)
    srd(28, 8, 9, XB, WS_XN)
    X, Yr, L, L2, PT = 10, 46, 82, 100, 120
    def pload(z, base):
        for i in range(9):
            if i % 4 == 0:
                I(f"s_mov_b32 s44, {z*S*D*4 + i*1024:#x}")
            I(f"buffer_load_dwordx4 v[{base+4*i}:{base+4*i+3}], v4, s[20:23], s44 offen offset:{(i%4)*1024}")
    if mode != 'A':
        for z in range(3):
            pload(z, PT + 36*z)
    for i in range(9):
        I(f"buffer_load_dwordx2 v[{L+2*i}:{L+2*i+1}], v3, s[12:15], 0 offen offset:{i*32}")
    if mode != 'C':
        for i in range(9):
            I(f"buffer_load_dwordx2 v[{L2+2*i}:{L2+2*i+1}], v3, s[16:19], 0 offen offset:{i*32}")
    I("s_waitcnt vmcnt(0)")
    for i in range(9):
        I(f"v_lshlrev_b32 v{X+4*i}, 16, v{L+2*i}")
        I(f"v_and_b32 v{X+4*i+1}, s40, v{L+2*i}")
        I(f"v_lshlrev_b32 v{X+4*i+2}, 16, v{L+2*i+1}")
        I(f"v_and_b32 v{X+4*i+3}, s40, v{L+2*i+1}")
    if mode != 'C':
        for i in range(9):
            I(f"v_lshlrev_b32 v{Yr+4*i}, 16, v{L2+2*i}")
            I(f"v_and_b32 v{Yr+4*i+1}, s40, v{L2+2*i}")
            I(f"v_lshlrev_b32 v{Yr+4*i+2}, 16, v{L2+2*i+1}")
            I(f"v_and_b32 v{Yr+4*i+3}, s40, v{L2+2*i+1}")
    if mode != 'A':
        for i in range(36):
            I(f"v_add_f32 v{PT+i}, v{PT+i}, v{PT+36+i}")
        pload(3, PT + 36)
        for i in range(36):
            I(f"v_add_f32 v{PT+i}, v{PT+i}, v{PT+72+i}")
        I("s_waitcnt vmcnt(0)")
        for i in range(36):
            I(f"v_add_f32 v{PT+i}, v{PT+i}, v{PT+36+i}")
        for i in range(0, 36, 2):
            rnd2(PT+i, PT+i+1, 5, 40)
        for i in range(36):
            I(f"v_add_f32 v{X+i}, v{X+i}, v{PT+i}")
        for i in range(0, 36, 2):
            if mode == 'C':
                I(f"v_cvt_pk_bf16_f32 v{L+i//2}, v{X+i}, v{X+i+1}")
            else:
                rnd2(X+i, X+i+1, 5, 40)
    if mode == 'C':
        for i in range(9):
            I(f"buffer_store_dwordx2 v[{L+2*i}:{L+2*i+1}], v3, s[24:27], 0 offen offset:{i*32}")
        I("s_waitcnt vmcnt(0)")
        kernel_end(name)
        return
    cnt = [0]
    def rowsum(r):
        off = 1024 * cnt[0]; cnt[0] += 1
        I(f"ds_write_b32 v9, v{r} offset:{off}")
        I("s_waitcnt lgkmcnt(0)")
        I("s_barrier")
        for q in range(4):
            I(f"ds_read_b128 v[{160+4*q}:{163+4*q}], v1 offset:{off+16*q}")
        I("s_waitcnt lgkmcnt(0)")
        I(f"v_add_f32 v{r}, v160, v161")
        for q in range(2, 16):
            I(f"v_add_f32 v{r}, v{r}, v{160+q}")
    def layernorm(src, dst):
        I(f"v_add_f32 v5, v{src}, v{src+1}")
        for i in range(2, 36):
            I(f"v_add_f32 v5, v5, v{src+i}")
        rowsum(5)
        I("v_mul_f32 v5, 0x3ae38e39, v5")
        I("v_mov_b32 v6, 0")
        for i in range(36):
            I(f"v_sub_f32 v7, v{src+i}, v5")
            I("v_fmac_f32 v6, v7, v7")
        rowsum(6)
        I("v_mul_f32 v6, 0x3ae38e39, v6")
        rnd2(5, 6, 7, 40)
        I("v_add_f32 v6, 0x3727c5ac, v6")
        I("v_cvt_pk_bf16_f32 v7, v6, v6")
        I("v_lshlrev_b32 v6, 16, v7")
        I("v_sqrt_f32 v6, v6")
        nop(0)
        I("v_cvt_pk_bf16_f32 v7, v6, v6")
        I("v_lshlrev_b32 v6, 16, v7")
        I("v_rcp_f32 v6, v6")
        for i in range(36):
            I(f"v_sub_f32 v{dst+i}, v{src+i}, v5")
        for i in range(0, 36, 2):
            rnd2(dst+i, dst+i+1, 7, 40)
        for i in range(36):
            I(f"v_mul_f32 v{dst+i}, v{dst+i}, v6")
        for i in range(0, 36, 2):
            rnd2(dst+i, dst+i+1, 7, 40)
    N = 120
    layernorm(X, N)
    for i in range(36):
        I(f"v_mul_f32 v{N+i}, v{N+i}, v{Yr+i}")
    for i in range(0, 36, 2):
        rnd2(N+i, N+i+1, 7, 40)
    for i in range(36):
        I(f"v_add_f32 v{X+i}, v{X+i}, v{N+i}")
    for i in range(0, 36, 2):
        I(f"v_cvt_pk_bf16_f32 v{L+i//2}, v{X+i}, v{X+i+1}")
        I(f"v_lshlrev_b32 v{X+i}, 16, v{L+i//2}")
        I(f"v_and_b32 v{X+i+1}, s40, v{L+i//2}")
    for i in range(9):
        I(f"buffer_store_dwordx2 v[{L+2*i}:{L+2*i+1}], v3, s[24:27], 0 offen offset:{i*32}")
    layernorm(X, N)
    for i in range(0, 36, 2):
        I(f"v_cvt_pk_bf16_f32 v{L2+i//2}, v{N+i}, v{N+i+1}")
    for i in range(9):
        if i == 8:
            I("s_movk_i32 s44, 4096")
        I(f"buffer_store_dwordx2 v[{L2+2*i}:{L2+2*i+1}], v8, s[28:31], {'s44' if i == 8 else '0'} offen offset:{(i%8)*512}")
    I("s_waitcnt vmcnt(0)")
    kernel_end(name)

def gemm_kernel(name, which):
    g1 = which == 1
    kernel_begin(name, 256)
    I("s_load_dwordx2 s[8:9], s[0:1], 96")
    I("s_and_b32 s3, s2, 7")
    I("s_lshr_b32 s44, s2, 3")
    if g1:
        I("s_and_b32 s45, s44, 7")
        I("s_lshr_b32 s44, s44, 3")
        I("s_lshl_b32 s3, s3, 2")
        I("s_add_u32 s46, s3, s44")
    else:
        I("s_and_b32 s46, s44, 3")
        I("s_bfe_u32 s49, s44, 0x20002")
        I("s_lshr_b32 s44, s44, 4")
        I("s_lshl_b32 s3, s3, 1")
        I("s_add_u32 s45, s3, s44")
    I("v_lshrrev_b32 v1, 6, v0")
    I("v_and_b32 v2, 63, v0")
    I("v_readfirstlane_b32 s42, v1")
    I("v_lshlrev_b32 v10, 4, v2")
    I("v_and_b32 v3, 15, v2")
    I("v_lshrrev_b32 v4, 4, v2")
    I("s_waitcnt lgkmcnt(0)")
    if g1:
        srd(12, 8, 9, W13B, WS_W13)
        srd(20, 8, 9, XB, WS_XN)
        srd(24, 8, 9, HB, WS_H)
        I("s_mul_i32 s50, s46, 331776")
        I("s_lshl_b32 s48, s45, 4")
        I("s_lshl_b32 s3, s42, 1")
        I("s_add_u32 s48, s48, s3")
        I("s_mul_i32 s58, s48, 18432")
        I("v_lshlrev_b32 v12, 4, v3")
        I("v_lshrrev_b32 v5, 1, v4")
        I("v_lshl_add_u32 v12, v5, 8, v12")
        I("v_and_b32 v5, 1, v4")
        I("v_lshl_add_u32 v12, v5, 3, v12")
        I("s_mul_i32 s3, s48, 147456")
        I("s_mul_i32 s47, s46, 4608")
        I("s_add_u32 s3, s3, s47")
        I("v_add_u32 v12, s3, v12")
        I("v_add_u32 v13, 147456, v12")
        I("v_mov_b32 v14, v10")
        NMB = 2
    else:
        srd(12, 8, 9, W2B, WS_W2)
        srd(20, 8, 9, HB, WS_H)
        srd(24, 8, 9, PB, WS_P)
        I("s_lshl_b32 s50, s46, 2")
        I("s_add_u32 s50, s50, s49")
        I("s_mul_i32 s50, s50, 331776")
        I("s_lshr_b32 s43, s42, 1")
        I("s_lshl_b32 s48, s45, 3")
        I("s_and_b32 s3, s42, 1")
        I("s_lshl_b32 s3, s3, 2")
        I("s_add_u32 s48, s48, s3")
        I("s_mul_i32 s58, s48, 144")
        I("s_mul_i32 s3, s49, 36")
        I("s_add_u32 s58, s58, s3")
        I("s_mul_i32 s3, s43, 9")
        I("s_add_u32 s58, s58, s3")
        I("s_lshl_b32 s58, s58, 10")
        I("s_mul_i32 s59, s48, 36")
        I("s_mul_i32 s3, s46, 9")
        I("s_add_u32 s59, s59, s3")
        I("s_lshl_b32 s59, s59, 10")
        I(f"s_mul_i32 s3, s49, {S*D*4}")
        I("s_add_u32 s59, s59, s3")
        I("s_mul_i32 s3, s43, 9216")
        I("v_add_u32 v14, s3, v10")
        NMB = 4
    I("s_lshl_b32 s53, s42, 12")
    I("s_and_b32 s54, s42, 3")
    I("s_lshl_b32 s54, s54, 10")
    I("s_add_u32 s54, s54, 32768")
    ACC, AR, BR = 112, 64, 40
    for i in range(144):
        I(f"v_mov_b32 v{ACC+i}, 0")
    vq = VmQueue()
    if g1:
        stages = [(p_, st) for p_ in range(2) for st in range(9)]
        SL = 20480
    else:
        stages = [(0, st) for st in range(9)]
        SL = STG
    NG = len(stages)
    def nfr(gi):
        return (20, 16)[stages[gi][0]] if g1 else 9
    def issueA(gi):
        st = stages[gi][1]
        b = AR + 16 * (gi % 3)
        ops = []
        if g1:
            for mb in range(2):
                ops.append((f"s_add_u32 s55, s58, {mb*18432 + st*2048}", None))
                for ks in range(2):
                    r = b + 8*ks + 4*mb
                    ops.append((f"buffer_load_dwordx4 v[{r}:{r+3}], v10, s[20:23], s55 offen offset:{1024*ks}", ('A', gi)))
        else:
            for mb in range(4):
                ops.append((f"s_add_u32 s55, s58, {mb*147456 + st*1024}", None))
                r = b + 4*mb
                ops.append((f"buffer_load_dwordx4 v[{r}:{r+3}], v10, s[20:23], s55 offen", ('A', gi)))
        return ops
    def issueD(gi):
        p_, st = stages[gi]
        slot = (gi % NSLOT) * SL
        ops = []
        if g1:
            src = st*20480 if p_ == 0 else 184320 + st*16384
            ops.append((f"s_add_u32 m0, s53, {slot}", None))
            ops.append((f"s_add_u32 s56, s50, {src}", None))
            ops.append((f"s_add_u32 s57, s56, s53", None))
            ops.append((f"buffer_load_dwordx4 v10, s[12:15], s57 offen lds", ('D', gi)))
            ops.append((f"s_add_u32 m0, s53, {slot + 8192}", None))
            ops.append((f"s_add_u32 s57, s57, 8192", None))
            ops.append((f"buffer_load_dwordx4 v10, s[12:15], s57 offen lds", ('D', gi)))
            if p_ == 0:
                ops.append((f"s_add_u32 m0, s54, {slot}", None))
                ops.append((f"s_add_u32 s57, s56, s54", None))
                ops.append((f"buffer_load_dwordx4 v10, s[12:15], s57 offen lds", ('D', gi)))
            return ops
        ops.append((f"s_add_u32 m0, s53, {slot}", None))
        ops.append((f"s_add_u32 s56, s50, {st*STG}", None))
        ops.append((f"s_add_u32 s57, s56, s53", None))
        for c in range(4):
            ops.append((f"buffer_load_dwordx4 v10, s[12:15], s57 offen offset:{1024*c} lds", ('D', gi)))
        ops.append((f"s_add_u32 m0, s54, {slot}", None))
        ops.append((f"s_add_u32 s57, s56, s54", None))
        ops.append((f"buffer_load_dwordx4 v10, s[12:15], s57 offen lds", ('D', gi)))
        return ops
    def emit_ops(ops):
        for o, tag in ops:
            I(o)
            if tag:
                vq.push(tag)
    def epi(mb, t):
        g = ACC + ((0*9 + t)*2 + mb)*4
        u = ACC + ((1*9 + t)*2 + mb)*4
        T = 24
        ops = []
        for i in (0, 2):
            ops.append((f"v_pk_mul_f32 v[{T+i}:{T+i+1}], v[{g+i}:{g+i+1}], v[28:29]", None))
        for i in range(4):
            ops.append((f"v_exp_f32 v{T+i}, v{T+i}", None))
        for i in (0, 2):
            ops.append((f"v_pk_mul_f32 v[{g+i}:{g+i+1}], v[{g+i}:{g+i+1}], v[{u+i}:{u+i+1}]", None))
        for i in (0, 2):
            ops.append((f"v_pk_add_f32 v[{T+i}:{T+i+1}], v[{T+i}:{T+i+1}], v[22:23]", None))
        for i in range(4):
            ops.append((f"v_rcp_f32 v{T+i}, v{T+i}", None))
        ops.append(("s_nop 0", None))
        for i in (0, 2):
            ops.append((f"v_pk_mul_f32 v[{g+i}:{g+i+1}], v[{g+i}:{g+i+1}], v[{T+i}:{T+i+1}]", None))
        ops.append((f"v_cvt_pk_bf16_f32 v{u}, v{g}, v{g+1}", None))
        ops.append((f"v_cvt_pk_bf16_f32 v{u+1}, v{g+2}, v{g+3}", None))
        if t < 8:
            ops.append((f"buffer_store_dwordx2 v[{u}:{u+1}], v{12+mb}, s[24:27], 0 offen offset:{512*t}", ('S', 0)))
        else:
            ops.append((f"buffer_store_dwordx2 v[{u}:{u+1}], v{12+mb}, s[24:27], s61 offen", ('S', 0)))
        return ops
    if g1:
        I("v_mov_b32 v28, 0xbfb8aa3b")
        I("v_mov_b32 v29, 0xbfb8aa3b")
        I("v_mov_b32 v22, 1.0")
        I("v_mov_b32 v23, 1.0")
        I("s_movk_i32 s61, 4096")
        I("s_lshl_b32 s53, s42, 10")
        I("s_and_b32 s54, s42, 3")
        I("s_lshl_b32 s54, s54, 10")
        I("s_add_u32 s54, s54, 16384")
    emit_ops(issueA(0)); emit_ops(issueD(0)); emit_ops(issueA(1)); emit_ops(issueD(1)); emit_ops(issueD(2))
    RING, LA = 6, 4
    epiq = []
    seq = [(gi, fi) for gi in range(NG) for fi in range(nfr(gi))]
    def sync(gi):
        vq.wait_for({('A', gi), ('D', gi)})
        I("s_barrier")
        I(f"v_add_u32 v{20 + (gi & 1)}, {(gi % NSLOT) * SL}, v14")
    def rd(n):
        gi, fi = seq[n]
        b = BR + 4 * (n % RING)
        I(f"ds_read_b128 v[{b}:{b+3}], v{20 + (gi & 1)} offset:{fi*1024}")
    sync(0)
    for n in range(LA):
        rd(n)
    side = []
    for n in range(len(seq)):
        gi, fi = seq[n]
        p_, st = stages[gi]
        NF = nfr(gi)
        if fi == NF // 2 - 1 - (0 if g1 else 0):
            emit_ops(side); side = []
            if gi + 1 < NG:
                sync(gi + 1)
            if gi + 2 < NG:
                side += issueA(gi + 2)
            if gi + 3 < NG:
                side += issueD(gi + 3)
            if g1 and gi == 9:
                for mb in range(2):
                    for t in range(5):
                        epiq += epi(mb, t)
        if n + LA < len(seq):
            rd(n + LA)
        if not g1:
            I(f"s_waitcnt lgkmcnt({min(LA, len(seq) - 1 - n)})")
        elif n % 2 == 0:
            I(f"s_waitcnt lgkmcnt({max(0, min(LA, len(seq) - 1 - n) - 1)})")
        b = BR + 4 * (n % RING)
        for mb in range(NMB):
            if g1:
                ntp = (5, 4)[p_]
                ks, t, mat = fi // (2*ntp), (fi % (2*ntp)) // 2 + 5*p_, fi % 2
                acc = ACC + ((mat*9 + t)*2 + mb) * 4
                ar = AR + 16*(gi % 3) + 8*ks + 4*mb
            else:
                acc = ACC + (fi*4 + mb) * 4
                ar = AR + 16*(gi % 3) + 4*mb
            I(f"v_mfma_f32_16x16x32_bf16 v[{acc}:{acc+3}], v[{b}:{b+3}], v[{ar}:{ar+3}], v[{acc}:{acc+3}]")
            if side:
                chunk, side = side[:1], side[1:]
                emit_ops(chunk)
            elif epiq:
                chunk, epiq = epiq[:2], epiq[2:]
                emit_ops(chunk)
    emit_ops(side)
    emit_ops(epiq)
    nop(15)
    if g1:
        for mb in range(2):
            for t in range(5, 9):
                emit_ops(epi(mb, t))
        I("s_waitcnt vmcnt(0)")
        kernel_end(name)
        return
    I("s_barrier")
    I("v_lshlrev_b32 v5, 4, v2")
    I("s_mul_i32 s3, s42, 18432")
    I("v_add_u32 v5, s3, v5")
    I("s_xor_b32 s3, s42, 4")
    I("s_mul_i32 s3, s3, 18432")
    I("v_lshlrev_b32 v6, 4, v2")
    I("v_add_u32 v6, s3, v6")
    I("s_xor_b32 s3, s42, 2")
    I("s_mul_i32 s3, s3, 18432")
    I("v_lshlrev_b32 v7, 4, v2")
    I("v_add_u32 v7, s3, v7")
    for hi in range(2):
        lab = f"{name}_h{hi}"
        if hi == 0:
            I("s_cmp_ge_u32 s42, 4")
            I(f"s_cbranch_scc1 {name}_h1")
        else:
            e(f"{lab}:")
        keep = list(range(18*hi, 18*hi + 18))
        give = list(range(18*(1-hi), 18*(1-hi) + 18))
        for i, fr in enumerate(give):
            I(f"ds_write_b128 v5, v[{ACC+4*fr}:{ACC+4*fr+3}] offset:{1024*i}")
        I("s_waitcnt lgkmcnt(0)")
        I("s_barrier")
        for i0 in range(0, 18, 6):
            for i in range(i0, i0 + 6):
                I(f"ds_read_b128 v[{40+4*(i-i0)}:{43+4*(i-i0)}], v6 offset:{1024*i}")
            I("s_waitcnt lgkmcnt(0)")
            for i in range(i0, i0 + 6):
                for c in range(4):
                    I(f"v_add_f32 v{ACC+4*keep[i]+c}, v{ACC+4*keep[i]+c}, v{40+4*(i-i0)+c}")
        I("s_barrier")
        for lo in range(2):
            lab2 = f"{name}_h{hi}l{lo}"
            if lo == 0:
                I("s_bitcmp1_b32 s42, 1")
                I(f"s_cbranch_scc1 {name}_h{hi}l1")
            else:
                e(f"{lab2}:")
            k9 = keep[9*lo:9*lo+9]
            g9 = keep[9*(1-lo):9*(1-lo)+9]
            for i, fr in enumerate(g9):
                I(f"ds_write_b128 v5, v[{ACC+4*fr}:{ACC+4*fr+3}] offset:{1024*i}")
            I("s_waitcnt lgkmcnt(0)")
            I("s_barrier")
            for i in range(9):
                I(f"ds_read_b128 v[{40+4*(i%6)}:{43+4*(i%6)}], v7 offset:{1024*i}")
                if i in (5, 8):
                    I("s_waitcnt lgkmcnt(0)")
                    for i2 in range(0 if i == 5 else 6, i + 1):
                        fr = k9[i2]
                        for c in range(4):
                            I(f"v_add_f32 v{ACC+4*fr+c}, v{ACC+4*fr+c}, v{40+4*(i2%6)+c}")
            for fr in k9:
                t, mb = fr // 4, fr % 4
                I(f"s_add_u32 s61, s59, {mb*36864 + t*1024}")
                I(f"buffer_store_dwordx4 v[{ACC+4*fr}:{ACC+4*fr+3}], v10, s[24:27], s61 offen")
            I("s_waitcnt vmcnt(0)")
            I("s_endpgm")
    kernel_end(name)

def main(path):
    hdr = open("interleave_layers__ssm_conv_h3__glu_gated_swiglu__prompt.s.ref").read().split("\n")
    for l in hdr:
        if l.startswith(";") and "@launch" not in l:
            e(l)
    L = [("conv_kernel", 144+864, 256, G.CONV_LDS), ("rowa_kernel", 512, 64, 0),
         ("gemm1_kernel", 256, 512, GEMM_LDS), ("gemm2_kernel", 256, 512, GEMM_LDS),
         ("rowb_kernel", 128, 256, 4096),
         ("gemm1_kernel", 256, 512, GEMM_LDS), ("gemm2_kernel", 256, 512, GEMM_LDS),
         ("rowc_kernel", 128, 256, 4096)]
    for k, g, b, l in L:
        e(f"; @launch kernel={k} grid=({g},1,1) block=({b},1,1) lds={l}")
    e('.amdgcn_target "amdgcn-amd-amdhsa--gfx950"')
    e(".text")
    G.conv_kernel("conv_kernel")
    i = out.index("    s_cbranch_scc1 conv_kernel_done")
    out[i-1] = "    s_cmp_ge_u32 s2, 1008"
    out.insert(i+1, "    s_cmp_ge_u32 s2, 144")
    out.insert(i+2, "    s_cbranch_scc1 prep_path")
    prep_kernel("prep_path")
    rowa_old("rowa_kernel")
    row_kernel("rowb_kernel", 'B')
    row_kernel("rowc_kernel", 'C')
    gemm_kernel("gemm1_kernel", 1)
    gemm_kernel("gemm2_kernel", 2)
    e('.section .rodata,"a"')
    for k, v in (("conv_kernel", 168), ("rowa_kernel", 160), ("rowb_kernel", 232), ("rowc_kernel", 232),
                 ("gemm1_kernel", 256), ("gemm2_kernel", 256)):
        e(".p2align 6")
        descriptor(k, v)
    open(path, "w").write("\n".join(out) + "\n")

if __name__ == "__main__":
    main(sys.argv[1] if len(sys.argv) > 1 else "interleave_layers__ssm_conv_h3__glu_gated_swiglu__prompt.s")
```
